```python
import torch

def _softmax(x, axis=-1):
    return torch.softmax(x, dim=axis)
def _gelu(x):
    return torch.nn.functional.gelu(x, approximate="tanh")
def _silu(x):
    return torch.nn.functional.silu(x)
def _sigmoid(x):
    return torch.sigmoid(x)
def _layernorm(x, axis=-1, eps=1e-5):
    m = x.mean(dim=axis, keepdim=True)
    v = x.var(dim=axis, keepdim=True, unbiased=False)
    return (x - m) / torch.sqrt(v + eps)
def _scatter_add(tgt, idx, src, axis=0):
    return tgt.clone().index_add_(axis, idx, src)
def _segment_sum(src, seg, n):
    out = torch.zeros((n,) + src.shape[1:], dtype=src.dtype)
    return out.index_add_(0, seg, src)
def _pad(x, pw):
    flat = tuple(v for pair in reversed(pw) for v in pair)
    return torch.nn.functional.pad(x, flat)

kernel_name = 'standalone__linear_attn_block__prompt'

def setup_inputs():

    _w = (lambda a: (lambda t: t.to(torch.bfloat16) if t.is_floating_point() else t)(torch.as_tensor(a)))
    B, S, D = 1, 2048, 640
    return {
        "x": _w((lambda *s: torch.randn(*s, dtype=torch.bfloat16) * 0.05)(B, S, D)),
        "wqkv": _w((lambda *s: torch.randn(*s, dtype=torch.bfloat16) * 0.4)(D, 3 * D)),
        "wo": _w((lambda *s: torch.randn(*s, dtype=torch.bfloat16) * 0.05)(D, D)),
    }

def reference(x, wqkv, wo):
    B, S, D = x.shape
    H = 32; Dh = D // H
    qkv = (lambda x, *d: x.permute(*d))((x @ wqkv).reshape(B, S, 3, H, Dh), 2, 0, 3, 1, 4)
    q, k, v = qkv[0], qkv[1], qkv[2]
    phi = lambda t: torch.where(t > 0, t + 1, torch.exp(t)) + 1e-6
    pq, pk = phi(q), phi(k)
    kv = torch.einsum("bhsd,bhse->bhde", pk, v)
    z = torch.einsum("bhsd->bhd", pk)
    num = torch.einsum("bhqd,bhde->bhqe", pq, kv)
    den = torch.einsum("bhqd,bhd->bhq", pq, z)[..., None] + 1e-6
    o = num / den
    return (lambda x, *d: x.permute(*d))(o, 0, 2, 1, 3).reshape(B, S, D) @ wo
```

```python
import sys

class A:
    def __init__(s): s.L = []
    def __call__(s, x): s.L.append("    " + x)
    def lab(s, x): s.L.append(x + ":")
    def c(s, x): s.L.append("    ; " + x)
    def nop(s, n):
        while n > 0:
            k = min(n, 16); s("s_nop %d" % (k - 1)); n -= k

a = A()
KV_OFF = 0x300000
Z_OFF = 0x340000
K1 = "standalone__linear_attn_block__prompt_kernel"
K2 = "linear_attn_out_kernel"

def vr(b, n): return "v[%d:%d]" % (b, b + n - 1)

def srd(a, d, lo, size, add=0):
    if add:
        a("s_add_u32 s%d, s%d, 0x%x" % (d, lo, add)); a("s_addc_u32 s%d, s%d, 0" % (d + 1, lo + 1))
    else:
        a("s_mov_b32 s%d, s%d" % (d, lo)); a("s_mov_b32 s%d, s%d" % (d + 1, lo + 1))
    a("s_mov_b32 s%d, 0x%x" % (d + 2, size)); a("s_mov_b32 s%d, 0x00020000" % (d + 3))

def phi_pair(a, dst, x0, x1, t0, t1, t2, t3):
    a("v_cvt_pk_bf16_f32 %s, %s, %s" % (t0, x0, x1))
    a("v_lshlrev_b32 %s, 16, %s" % (t1, t0))
    a("v_and_b32 %s, 0xffff0000, %s" % (t0, t0))
    a("v_min_f32 %s, 0, %s" % (t2, t1))
    a("v_min_f32 %s, 0, %s" % (t3, t0))
    a("v_mul_f32 %s, 0x3fb8aa3b, %s" % (t2, t2))
    a("v_mul_f32 %s, 0x3fb8aa3b, %s" % (t3, t3))
    a("v_exp_f32 %s, %s" % (t2, t2))
    a("v_exp_f32 %s, %s" % (t3, t3))
    a("v_max_f32 %s, 0, %s" % (t1, t1))
    a("v_max_f32 %s, 0, %s" % (t0, t0))
    a("v_add_f32 %s, %s, %s" % (t1, t1, t2))
    a("v_add_f32 %s, %s, %s" % (t0, t0, t3))
    a("v_add_f32 %s, 0x358637bd, %s" % (t1, t1))
    a("v_add_f32 %s, 0x358637bd, %s" % (t0, t0))
    a("v_cvt_pk_bf16_f32 %s, %s, %s" % (dst, t1, t0))

def gen_k1(a):
    a.L.append(".globl %s\n.p2align 8\n.type %s,@function\n%s:" % (K1, K1, K1))
    a("s_cmp_ge_u32 s2, 192")
    a("s_cbranch_scc1 K1_END")
    a("s_load_dwordx4 s[4:7], s[0:1], 0")
    a("s_load_dwordx4 s[24:27], s[0:1], 32")
    a("v_and_b32 v1, 63, v0")
    a("v_lshrrev_b32 v2, 6, v0")
    a("s_nop 0")
    a("v_readfirstlane_b32 s28, v2")
    a("s_waitcnt lgkmcnt(0)")
    srd(a, 8, 4, 2621440)
    srd(a, 12, 6, 2457600)
    srd(a, 16, 26, 2621440)
    srd(a, 20, 26, 0x50000, KV_OFF)
    a("s_cmp_ge_u32 s2, 128")
    a("s_cbranch_scc1 K1_DEC_Q")
    a("s_and_b32 s30, s2, 7")
    a("s_lshr_b32 s29, s2, 3")
    a("s_mul_i32 s31, s30, 160")
    a("s_add_u32 s31, s31, 1280")
    a("s_mov_b32 s32, 1120")
    a("s_branch K1_DEC_DONE")
    a.lab("K1_DEC_Q")
    a("s_sub_u32 s33, s2, 128")
    a("s_and_b32 s30, s33, 3")
    a("s_lshr_b32 s29, s33, 2")
    a("s_mul_i32 s31, s30, 320")
    a("s_mov_b32 s32, 0")
    a.lab("K1_DEC_DONE")
    a("s_lshl_b32 s33, s28, 6")
    a("v_add_u32 v9, s33, v1")
    a("s_movk_i32 s34, 3277")
    for i in range(5):
        a("v_add_u32 v10, %d, v9" % (i * 256))
        a("v_mul_u32_u24 v11, s34, v10")
        a("v_lshrrev_b32 v11, 16, v11")
        a("v_mul_u32_u24 v12, 20, v11")
        a("v_sub_u32 v12, v10, v12")
        a("v_mul_u32_u24 v13, 3840, v11")
        a("v_lshl_add_u32 v13, v12, 4, v13")
        a("v_add_u32 v13, s31, v13")
        a("v_cmp_lt_u32 vcc, 9, v12")
        a("v_mov_b32 v14, s32")
        a("s_nop 1")
        a("v_cndmask_b32 v14, 0, v14, vcc")
        a("v_add_u32 v%d, v13, v14" % (2 + i))
    a("s_lshl_b32 s33, s29, 7")
    a("s_lshl_b32 s34, s28, 5")
    a("s_add_u32 s33, s33, s34")
    a("v_and_b32 v10, 31, v1")
    a("v_add_u32 v10, s33, v10")
    a("v_mul_u32_u24 v7, 1280, v10")
    a("v_lshrrev_b32 v11, 5, v1")
    a("v_lshl_add_u32 v7, v11, 6, v7")
    a("v_lshlrev_b32 v12, 5, v11")
    a("v_bfe_u32 v13, v1, 2, 2")
    a("v_add_u32 v12, v12, v13")
    a("v_mul_u32_u24 v8, 320, v12")
    a("v_bfe_u32 v13, v1, 4, 1")
    a("v_lshl_add_u32 v8, v13, 5, v8")
    a("v_and_b32 v13, 3, v1")
    a("v_lshl_add_u32 v8, v13, 3, v8")
    a("s_lshl_b32 s35, s28, 10")

    ACC = 16; XF = 96; BF = 144
    def dma(c):
        buf = (c % 3) * 20480
        a("s_mov_b32 s36, %d" % (c * 64 * 3840))
        for i in range(5):
            a("s_add_u32 m0, s35, %d" % (buf + i * 4096))
            a("s_nop 0")
            a("buffer_load_dwordx4 v%d, s[12:15], s36 offen lds" % (2 + i))
    def xload(c):
        for s in range(4):
            a("buffer_load_dwordx4 %s, v7, s[8:11], 0 offen offset:%d" % (vr(XF + (c % 3) * 16 + 4 * s, 4), c * 128 + 16 * s))
    def breads(c, s, par):
        buf = (c % 3) * 20480
        for t in range(5):
            for hh in range(2):
                a("ds_read_b64_tr_b16 %s, v8 offset:%d" % (vr(BF + par * 20 + t * 4 + hh * 2, 2), buf + s * 2560 + hh * 1280 + t * 64))

    dma(0); xload(0); dma(1); xload(1)
    for i in range(80): a("v_mov_b32 v%d, 0" % (ACC + i))
    a("s_cmp_ge_u32 s2, 8")
    a("s_cbranch_scc1 K1_NOZERO")
    a("v_mov_b32 v184, 0"); a("v_mov_b32 v185, 0"); a("v_mov_b32 v186, 0"); a("v_mov_b32 v187, 0")
    a("s_mul_i32 s33, s30, 30720")
    a("v_lshlrev_b32 v188, 4, v0")
    for i in range(8):
        if i == 7:
            a("v_cmp_gt_u32 vcc, 128, v0")
            a("s_and_saveexec_b64 s[40:41], vcc")
        a("buffer_store_dwordx4 v[184:187], v188, s[20:23], s33 offen offset:%d sc0 sc1" % 0)
        if i < 7: a("s_add_u32 s33, s33, 4096")
    a("s_mul_i32 s33, s30, 1536")
    a("s_add_u32 s33, s33, 0x%x" % (Z_OFF - KV_OFF))
    a("v_cmp_gt_u32 vcc, 96, v0")
    a("s_and_b64 exec, exec, vcc")
    a("buffer_store_dwordx4 v[184:187], v188, s[20:23], s33 offen sc0 sc1")
    a("s_mov_b64 exec, s[40:41]")
    a("s_waitcnt vmcnt(0)")
    a("s_barrier")
    a("s_cmp_lg_u32 s28, 0")
    a("s_cbranch_scc1 K1_NOZERO")
    a("v_mov_b32 v184, 1")
    a("v_mov_b32 v185, 0")
    a("s_lshl_b32 s33, s30, 2")
    a("s_add_u32 s38, s24, s33"); a("s_addc_u32 s39, s25, 0")
    a("v_cmp_eq_u32 vcc, 0, v1")
    a("s_and_saveexec_b64 s[40:41], vcc")
    a("global_store_dword v185, v184, s[38:39] sc0 sc1")
    a("s_mov_b64 exec, s[40:41]")
    a.lab("K1_NOZERO")
    a("s_cmp_ge_u32 s2, 128")
    a("s_cbranch_scc1 K1_QLOOP")

    def mainloop(swap):
        for c in range(10):
            a("s_waitcnt vmcnt(%d)" % (9 if c < 9 else 0))
            a("s_barrier")
            if c + 2 < 10:
                dma(c + 2); xload(c + 2)
            breads(c, 0, 0)
            for s in range(4):
                a("s_waitcnt lgkmcnt(0)")
                if s < 3: breads(c, s + 1, (s + 1) % 2)
                for t in range(5):
                    xf = vr(XF + (c % 3) * 16 + 4 * s, 4); bf = vr(BF + (s % 2) * 20 + 4 * t, 4)
                    d = vr(ACC + 16 * t, 16)
                    if swap: a("v_mfma_f32_32x32x16_bf16 %s, %s, %s, %s" % (d, bf, xf, d))
                    else:    a("v_mfma_f32_32x32x16_bf16 %s, %s, %s, %s" % (d, xf, bf, d))
    mainloop(False)
    a.nop(16)
    PK = 96; VV = 120
    for t in range(3):
        for p in range(8):
            phi_pair(a, "v%d" % (PK + t * 8 + p), "v%d" % (ACC + 16 * t + 2 * p), "v%d" % (ACC + 16 * t + 2 * p + 1), "v184", "v185", "v186", "v187")
    for t in range(2, 5):
        for p in range(8):
            a("v_cvt_pk_bf16_f32 v%d, v%d, v%d" % (VV + (t - 2) * 8 + p, ACC + 16 * t + 2 * p, ACC + 16 * t + 2 * p + 1))
    ONES = 144
    for i in range(4): a("v_mov_b32 v%d, 0x3f803f80" % (ONES + i))
    RES = 148
    def R(T): return (16 + 16 * T) if T < 5 else (148 + 16 * (T - 5))
    a.nop(2)
    pairs = [(0, 2), (0, 3), (1, 3), (1, 4), (2, 4)]
    for T, (kt, vt) in enumerate(pairs):
        for hh in range(2):
            A_ = vr(VV + (vt - 2) * 8 + hh * 4, 4); B_ = vr(PK + kt * 8 + hh * 4, 4)
            a("v_mfma_f32_32x32x16_bf16 %s, %s, %s, %s" % (vr(R(T), 16), A_, B_, "0" if hh == 0 else vr(R(T), 16)))
    for kt in range(3):
        T = 5 + kt
        for hh in range(2):
            a("v_mfma_f32_32x32x16_bf16 %s, %s, %s, %s" % (vr(R(T), 16), vr(ONES, 4), vr(PK + kt * 8 + hh * 4, 4), "0" if hh == 0 else vr(R(T), 16)))
    a.nop(16)
    a("s_barrier")
    a("v_lshlrev_b32 v200, 4, v1")
    a("s_lshl_b32 s33, s28, 15")
    a("v_add_u32 v201, s33, v200")
    for T in range(8):
        for q in range(4):
            a("ds_write_b128 v201, %s offset:%d" % (vr(R(T) + 4 * q, 4), T * 4096 + q * 1024))
    a("s_waitcnt lgkmcnt(0)")
    a("s_barrier")
    a("s_lshl_b32 s33, s28, 13")
    a("v_add_u32 v201, s33, v200")
    a("v_add_u32 v202, 0x10000, v201")
    for u in range(2):
        for q in range(4):
            for src in range(4):
                a("ds_read_b128 %s, v%d offset:%d" % (vr(204 + 4 * src, 4), 201 + src // 2, (src % 2) * 32768 + u * 4096 + q * 1024))
            a("s_waitcnt lgkmcnt(0)")
            for i in range(4):
                a("v_add_f32 v%d, v%d, v%d" % (204 + i, 204 + i, 208 + i))
                a("v_add_f32 v%d, v%d, v%d" % (212 + i, 212 + i, 216 + i))
                a("v_add_f32 v%d, v%d, v%d" % (16 + u * 16 + q * 4 + i, 204 + i, 212 + i))
    a("s_lshl_b32 s33, s30, 2")
    a("s_add_u32 s38, s24, s33"); a("s_addc_u32 s39, s25, 0")
    a("v_mov_b32 v200, 0")
    a.lab("K1_POLL")
    a("global_load_dword v201, v200, s[38:39] sc0 sc1")
    a("s_waitcnt vmcnt(0)")
    a("v_readfirstlane_b32 s33, v201")
    a("s_cmp_eq_u32 s33, 0")
    a("s_cbranch_scc1 K1_POLL")
    a("v_and_b32 v200, 31, v1")
    a("v_lshrrev_b32 v201, 5, v1")
    a("v_lshlrev_b32 v201, 2, v201")
    a("s_mul_i32 s34, s30, 30720")
    a("s_movk_i32 s37, 3277")
    a("s_movk_i32 s42, 80")
    for u in range(2):
        a("s_lshl_b32 s33, s28, 1"); a("s_add_u32 s33, s33, %d" % u)
        a("s_cmp_ge_u32 s33, 5")
        a("s_cbranch_scc1 K1_ZT%d" % u)
        a("s_lshr_b32 s35, s33, 1"); a("s_lshl_b32 s35, s35, 5")
        a("s_add_u32 s36, s33, 1"); a("s_lshr_b32 s36, s36, 1"); a("s_lshl_b32 s36, s36, 5"); a("s_sub_u32 s36, s36, 16")
        a("v_add_u32 v202, s35, v200")
        a("v_mul_u32_u24 v203, s37, v202"); a("v_lshrrev_b32 v203, 16, v203")
        a("v_add_u32 v204, s36, v201")
        for i in range(16):
            m = (i & 3) + 8 * (i >> 2)
            a("v_add_u32 v205, %d, v204" % m)
            a("v_mul_u32_u24 v206, s37, v205"); a("v_lshrrev_b32 v206, 16, v206")
            a("v_mul_u32_u24 v207, 96, v205")
            a("v_add_lshl_u32 v207, v207, v202, 2")
            a("v_cmp_gt_u32 vcc, 80, v205")
            a("v_cmp_eq_u32 s[40:41], v206, v203")
            a("s_and_b64 vcc, vcc, s[40:41]")
            a("v_cmp_gt_u32 s[40:41], s42, v202")
            a("s_and_b64 vcc, vcc, s[40:41]")
            a("v_mov_b32 v208, 0x7ffffff0")
            a("s_nop 0")
            a("v_cndmask_b32 v207, v208, v207, vcc")
            a("buffer_atomic_add_f32 v%d, v207, s[20:23], s34 offen" % (16 + u * 16 + i))
        a("s_branch K1_ZD%d" % u)
        a.lab("K1_ZT%d" % u)
        a("s_sub_u32 s35, s33, 5"); a("s_lshl_b32 s35, s35, 5")
        a("v_add_u32 v202, s35, v200")
        a("v_mul_u32_u24 v203, s37, v202"); a("v_lshrrev_b32 v203, 16, v203")
        a("v_mul_u32_u24 v207, 96, v203")
        a("v_add_lshl_u32 v207, v207, v202, 2")
        a("v_cmp_gt_u32 vcc, 80, v202")
        a("v_cmp_gt_u32 s[40:41], 32, v1")
        a("s_and_b64 vcc, vcc, s[40:41]")
        a("v_mov_b32 v208, 0x7ffffff0")
        a("s_nop 0")
        a("v_cndmask_b32 v207, v208, v207, vcc")
        a("s_mul_i32 s35, s30, 1536")
        a("s_add_u32 s35, s35, 0x%x" % (Z_OFF - KV_OFF))
        a("buffer_atomic_add_f32 v%d, v207, s[20:23], s35 offen" % (16 + u * 16))
        a.lab("K1_ZD%d" % u)
    a("s_endpgm")

    a.lab("K1_QLOOP")
    mainloop(True)
    a.nop(16)
    a("s_lshl_b32 s33, s29, 7"); a("s_lshl_b32 s34, s28, 5"); a("s_add_u32 s33, s33, s34")
    a("v_and_b32 v10, 31, v1"); a("v_add_u32 v10, s33, v10")
    a("v_mul_u32_u24 v7, 1280, v10")
    a("v_lshrrev_b32 v11, 5, v1")
    a("v_lshl_add_u32 v7, v11, 3, v7")
    a("s_mul_i32 s33, s30, 320")
    for t in range(5):
        for qq in range(4):
            b = ACC + 16 * t + 4 * qq
            phi_pair(a, "v184", "v%d" % b, "v%d" % (b + 1), "v188", "v189", "v190", "v191")
            phi_pair(a, "v185", "v%d" % (b + 2), "v%d" % (b + 3), "v188", "v189", "v190", "v191")
            a("buffer_store_dwordx2 v[184:185], v7, s[16:19], s33 offen offset:%d" % (t * 64 + qq * 16))
            a("s_nop 1")
    a.lab("K1_END")
    a("s_endpgm")


def gen_k2(a):
    a.L.append(".globl %s\n.p2align 8\n.type %s,@function\n%s:" % (K2, K2, K2))
    a("s_cmp_ge_u32 s2, 256")
    a("s_cbranch_scc1 K2_END")
    a("s_load_dwordx4 s[4:7], s[0:1], 16")
    a("s_load_dwordx2 s[26:27], s[0:1], 40")
    a("v_and_b32 v1, 63, v0")
    a("v_lshrrev_b32 v2, 6, v0")
    a("s_nop 0")
    a("v_readfirstlane_b32 s28, v2")
    a("s_waitcnt lgkmcnt(0)")
    srd(a, 8, 4, 819200)
    srd(a, 12, 6, 2621440)
    srd(a, 16, 26, 2621440)
    srd(a, 20, 26, 0x50000, KV_OFF)
    a("s_and_b32 s30, s2, 7")
    a("s_lshr_b32 s29, s2, 3")
    a("s_mul_i32 s33, s28, 160*1280")
    a("s_mul_i32 s34, s30, 160")
    a("s_add_u32 s33, s33, s34")
    a("s_movk_i32 s34, 6554")
    for b in range(5):
        a("v_add_u32 v10, %d, v1" % (64 * b))
        a("v_mul_u32_u24 v11, s34, v10"); a("v_lshrrev_b32 v11, 16, v11")
        a("v_mul_u32_u24 v12, 10, v11"); a("v_sub_u32 v12, v10, v12")
        a("v_mul_u32_u24 v13, 1280, v11")
        a("v_lshl_add_u32 v13, v12, 4, v13")
        a("v_add_u32 v%d, s33, v13" % (2 + b))
    a("s_mul_i32 s35, s28, 25600")
    for aa in range(5):
        a("s_mov_b32 s36, %d" % (aa * 32 * 1280))
        for b in range(5):
            a("s_add_u32 m0, s35, %d" % ((aa * 5 + b) * 1024))
            a("s_nop 0")
            a("buffer_load_dwordx4 v%d, s[8:11], s36 offen lds" % (2 + b))
    a("v_and_b32 v10, 15, v1")
    a("v_lshrrev_b32 v11, 4, v1")
    a("v_mul_u32_u24 v7, 96, v10"); a("v_lshl_add_u32 v7, v11, 3, v7"); a("v_lshlrev_b32 v7, 2, v7")
    a("v_and_b32 v12, 3, v10"); a("v_mul_u32_u24 v8, 96, v12"); a("v_lshl_add_u32 v8, v11, 3, v8"); a("v_lshlrev_b32 v8, 2, v8")
    a("v_add_u32 v8, 0x%x, v8" % (Z_OFF - KV_OFF))
    a("s_lshl_b32 s33, s29, 6"); a("v_add_u32 v12, s33, v10"); a("v_mul_u32_u24 v9, 1280, v12"); a("v_lshl_add_u32 v9, v11, 4, v9")
    a("v_cmp_eq_u32 s[40:41], 0, v11"); a("v_cmp_gt_u32 s[42:43], 2, v11"); a("v_cmp_gt_u32 s[44:45], 3, v11")
    OP = 16; AF = 96; BFr = 144; TMP = 168; ND = 216
    ts_list = [(0,0),(1,0),(1,1),(2,0),(2,1),(3,1),(3,2),(4,1),(4,2)]
    for u in range(2):
        a("s_lshl_b32 s33, s28, 1"); a("s_add_u32 s33, s33, %d" % u)
        a("s_mul_i32 s36, s33, 30720")
        a("s_mul_i32 s37, s33, 1536")
        a("s_mul_i32 s38, s33, 160")
        frs = [("kv", t, s_) for (t, s_) in ts_list] + [("z", 0, s_) for s_ in range(3)]
        for b0 in range(0, 12, 6):
            for j, (ty, t, s_) in enumerate(frs[b0:b0 + 6]):
                if ty == "kv":
                    a("s_add_u32 s39, s36, %d" % (t * 6144))
                    a("buffer_load_dwordx4 %s, v7, s[20:23], s39 offen offset:%d" % (vr(TMP + 8 * j, 4), s_ * 128))
                    a("buffer_load_dwordx4 %s, v7, s[20:23], s39 offen offset:%d" % (vr(TMP + 8 * j + 4, 4), s_ * 128 + 16))
                else:
                    a("buffer_load_dwordx4 %s, v8, s[20:23], s37 offen offset:%d" % (vr(TMP + 8 * j, 4), s_ * 128))
                    a("buffer_load_dwordx4 %s, v8, s[20:23], s37 offen offset:%d" % (vr(TMP + 8 * j + 4, 4), s_ * 128 + 16))
            a("s_waitcnt vmcnt(0)")
            for j in range(6):
                for p in range(4):
                    a("v_cvt_pk_bf16_f32 v%d, v%d, v%d" % (AF + 4 * (b0 + j) + p, TMP + 8 * j + 2 * p, TMP + 8 * j + 2 * p + 1))
        for nt in range(4):
            a("s_add_u32 s39, s38, %d" % (nt * 16 * 1280))
            for s_ in range(3):
                a("buffer_load_dwordx4 %s, v9, s[16:19], s39 offen offset:%d" % (vr(BFr + 4 * s_, 4), s_ * 64))
            a("s_waitcnt vmcnt(0)")
            for s_ in range(3):
                a("v_mfma_f32_16x16x32_bf16 %s, %s, %s, %s" % (vr(ND, 4), vr(AF + 4 * (9 + s_), 4), vr(BFr + 4 * s_, 4), "0" if s_ == 0 else vr(ND, 4)))
            seen = set()
            for j, (t, s_) in enumerate(ts_list):
                d = vr(ND + 4 + 4 * t, 4)
                a("v_mfma_f32_16x16x32_bf16 %s, %s, %s, %s" % (d, vr(AF + 4 * j, 4), vr(BFr + 4 * s_, 4), d if t in seen else "0"))
                seen.add(t)
            a.nop(10)
            for i in range(4):
                a("v_add_f32 v%d, 0x358637bd, v%d" % (ND + i, ND + i))
            for i in range(4):
                a("v_rcp_f32 v%d, v%d" % (ND + i, ND + i))
            a("s_nop 1")
            a("v_mov_b32 v10, v%d" % ND)
            a("v_cndmask_b32 v11, v%d, v%d, s[40:41]" % (ND + 1, ND))
            a("v_cndmask_b32 v12, v%d, v%d, s[42:43]" % (ND + 2, ND + 1))
            a("v_cndmask_b32 v13, v%d, v%d, s[44:45]" % (ND + 3, ND + 2))
            a("v_mov_b32 v14, v%d" % (ND + 3))
            for t in range(5):
                for i in range(4):
                    a("v_mul_f32 v%d, v%d, v%d" % (ND + 4 + 4 * t + i, ND + 4 + 4 * t + i, 10 + t))
                T = u * 5 + t
                ks = T // 2; hf = T % 2
                base = OP + (ks * 4 + nt) * 4 + hf * 2
                a("v_cvt_pk_bf16_f32 v%d, v%d, v%d" % (base, ND + 4 + 4 * t, ND + 4 + 4 * t + 1))
                a("v_cvt_pk_bf16_f32 v%d, v%d, v%d" % (base + 1, ND + 4 + 4 * t + 2, ND + 4 + 4 * t + 3))
    ACC = 96; WF = 176
    a("v_and_b32 v10, 15, v1"); a("v_lshrrev_b32 v11, 4, v1")
    a("v_lshrrev_b32 v12, 2, v10"); a("v_lshl_add_u32 v12, v11, 2, v12"); a("v_mul_u32_u24 v2, 160, v12")
    a("v_and_b32 v12, 3, v1"); a("v_lshl_add_u32 v2, v12, 3, v2"); a("v_add_u32 v2, s35, v2")
    a("s_waitcnt vmcnt(0)")
    for ks in range(5):
        for mt in range(5):
            for hf in range(2):
                a("ds_read_b64_tr_b16 %s, v2 offset:%d" % (vr(WF + 4 * mt + 2 * hf, 2), (2 * ks + hf) * 16 * 160 + mt * 32))
        a("s_waitcnt lgkmcnt(0)")
        for mt in range(5):
            for nt in range(4):
                d = vr(ACC + (mt * 4 + nt) * 4, 4)
                a("v_mfma_f32_16x16x32_bf16 %s, %s, %s, %s" % (d, vr(WF + 4 * mt, 4), vr(OP + (ks * 4 + nt) * 4, 4), "0" if ks == 0 else d))
    a.nop(10)
    a("s_barrier")
    a("v_lshlrev_b32 v3, 4, v1")
    a("s_mul_i32 s33, s28, 20480")
    a("v_add_u32 v4, s33, v3")
    for j in range(20):
        a("ds_write_b128 v4, %s offset:%d" % (vr(ACC + 4 * j, 4), j * 1024))
    a("s_waitcnt lgkmcnt(0)")
    a("s_barrier")
    a("s_mul_i32 s33, s28, 5120")
    a("v_add_u32 v4, s33, v3")
    a("v_add_u32 v5, 40960, v4")
    for jj in range(5):
        for src in range(4):
            a("ds_read_b128 %s, v%d offset:%d" % (vr(16 + 4 * src, 4), 4 + src // 2, (src % 2) * 20480 + jj * 1024))
        a("s_waitcnt lgkmcnt(0)")
        for i in range(4):
            a("v_add_f32 v%d, v%d, v%d" % (16 + i, 16 + i, 20 + i))
            a("v_add_f32 v%d, v%d, v%d" % (24 + i, 24 + i, 28 + i))
            a("v_add_f32 v%d, v%d, v%d" % (16 + i, 16 + i, 24 + i))
        a("v_cvt_pk_bf16_f32 v32, v16, v17"); a("v_cvt_pk_bf16_f32 v33, v18, v19")
        a("s_mul_i32 s33, s28, 5"); a("s_add_u32 s33, s33, %d" % jj)
        a("s_lshr_b32 s34, s33, 2")
        a("s_and_b32 s35, s33, 3")
        a("s_lshl_b32 s36, s29, 6"); a("s_lshl_b32 s37, s35, 4"); a("s_add_u32 s36, s36, s37")
        a("v_add_u32 v34, s36, v10"); a("v_mul_u32_u24 v34, 1280, v34")
        a("v_lshl_add_u32 v34, v11, 3, v34")
        a("s_mul_i32 s36, s30, 160"); a("s_lshl_b32 s37, s34, 5"); a("s_add_u32 s36, s36, s37")
        a("buffer_store_dwordx2 v[32:33], v34, s[12:15], s36 offen")
        a("s_nop 1")
    a.lab("K2_END")
    a("s_endpgm")

def kd(name, vg, sg=96):
    return """.amdhsa_kernel %s
  .amdhsa_next_free_vgpr %d
  .amdhsa_next_free_sgpr %d
  .amdhsa_accum_offset %d
  .amdhsa_group_segment_fixed_size 0
  .amdhsa_kernarg_size 48
  .amdhsa_user_sgpr_count 2
  .amdhsa_user_sgpr_kernarg_segment_ptr 1
  .amdhsa_system_sgpr_workgroup_id_x 1
.end_amdhsa_kernel
""" % (name, vg, sg, (vg + 3) // 4 * 4)

if __name__ == "__main__":
    hdr = open("standalone__linear_attn_block__prompt.s.ref").read().split("; Override launch")[0]
    out = hdr
    out += "; @launch kernel=%s grid=(192,1,1) block=(256,1,1) lds=131072\n" % K1
    out += "; @launch kernel=%s grid=(256,1,1) block=(256,1,1) lds=102400\n" % K2
    out += '.amdgcn_target "amdgcn-amd-amdhsa--gfx950"\n.text\n'
    gen_k1(a)
    gen_k2(a)
    out += "\n".join(a.L) + "\n"
    out += '.section .rodata,"a"\n.p2align 6\n' + kd(K1, 224) + kd(K2, 240)
    open(sys.argv[1] if len(sys.argv) > 1 else "k.s", "w").write(out)
```

```python
import sys, os

class A:
    def __init__(s): s.L = []
    def __call__(s, x): s.L.append("    " + x)
    def lab(s, x): s.L.append(x + ":")
    def nop(s, n):
        while n > 0:
            k = min(n, 16); s("s_nop %d" % (k - 1)); n -= k

a = A()
NOMFMA = int(os.environ.get("NOMFMA", "0"))
NOLOAD = int(os.environ.get("NOLOAD", "0"))
NOLDS = int(os.environ.get("NOLDS", "0"))
FREE = int(os.environ.get("FREE", "0"))
STAMP = int(os.environ.get("STAMP", "0"))
_st = [0]
def stamp(a):
    if STAMP:
        a("s_memtime s[%d:%d]" % (60 + 2 * _st[0], 61 + 2 * _st[0])); _st[0] += 1
def stamp_flush(a, dbg_lo, wgs, t0="v2", t1="v3"):
    if STAMP:
        n = _st[0]
        lab = "SF%d" % len(a.L)
        a("s_waitcnt lgkmcnt(0)")
        for k, (wg, wv) in enumerate(wgs):
            a("s_cmp_lg_u32 s2, %d" % wg); a("s_cbranch_scc1 %s_%d" % (lab, k))
            a("s_cmp_lg_u32 s28, %d" % wv); a("s_cbranch_scc1 %s_%d" % (lab, k))
            for i in range(n):
                a("v_mov_b32 %s, s%d" % (t0, 60 + 2 * i)); a("v_mov_b32 %s, %d" % (t1, k * 64 + i * 4))
                a("global_store_dword %s, %s, s[%d:%d]" % (t1, t0, dbg_lo, dbg_lo + 1)); a("s_nop 1")
            a.lab("%s_%d" % (lab, k))
        _st[0] = 0

KV_OFF = 0x300000
Z_REL = 51200
KV_SIZE = 53760
K1 = "standalone__linear_attn_block__prompt_kernel"
K2 = "linear_attn_out_kernel"
OOB = "0x7ffffff0"

def vr(b, n): return "v[%d:%d]" % (b, b + n - 1)

def srd(a, d, lo, size, add=0):
    if add:
        a("s_add_u32 s%d, s%d, 0x%x" % (d, lo, add)); a("s_addc_u32 s%d, s%d, 0" % (d + 1, lo + 1))
    else:
        a("s_mov_b32 s%d, s%d" % (d, lo)); a("s_mov_b32 s%d, s%d" % (d + 1, lo + 1))
    a("s_mov_b32 s%d, 0x%x" % (d + 2, size)); a("s_mov_b32 s%d, 0x00020000" % (d + 3))

def phi_pair(a, dst, x0, x1, t0, t1, t2, t3):
    a("v_cvt_pk_bf16_f32 %s, %s, %s" % (t0, x0, x1))
    a("v_lshlrev_b32 %s, 16, %s" % (t1, t0))
    a("v_and_b32 %s, 0xffff0000, %s" % (t0, t0))
    a("v_min_f32 %s, 0, %s" % (t2, t1))
    a("v_min_f32 %s, 0, %s" % (t3, t0))
    a("v_mul_f32 %s, 0x3fb8aa3b, %s" % (t2, t2))
    a("v_mul_f32 %s, 0x3fb8aa3b, %s" % (t3, t3))
    a("v_exp_f32 %s, %s" % (t2, t2))
    a("v_exp_f32 %s, %s" % (t3, t3))
    a("v_max_f32 %s, 0, %s" % (t1, t1))
    a("v_max_f32 %s, 0, %s" % (t0, t0))
    a("v_add_f32 %s, %s, %s" % (t1, t1, t2))
    a("v_add_f32 %s, %s, %s" % (t0, t0, t3))
    a("v_add_f32 %s, 0x358637bd, %s" % (t1, t1))
    a("v_add_f32 %s, 0x358637bd, %s" % (t0, t0))
    a("v_cvt_pk_bf16_f32 %s, %s, %s" % (dst, t1, t0))

STG = 36864
def gen_k1(a):
    a.L.append(".globl %s\n.p2align 8\n.type %s,@function\n%s:" % (K1, K1, K1))
    a("s_cmp_ge_u32 s2, 192")
    a("s_cbranch_scc1 K1_END")
    stamp(a)
    a("s_load_dwordx4 s[4:7], s[0:1], 0")
    a("s_load_dwordx4 s[24:27], s[0:1], 32")
    a("v_and_b32 v1, 63, v0")
    a("v_lshrrev_b32 v2, 6, v0")
    a("s_nop 0")
    a("v_readfirstlane_b32 s28, v2")
    a("s_waitcnt lgkmcnt(0)")
    a("s_cmp_ge_u32 s2, 128")
    a("s_cbranch_scc1 K1_DEC_Q")
    a("s_and_b32 s30, s2, 7")
    a("s_lshr_b32 s29, s2, 3")
    a("s_mul_i32 s31, s30, 160")
    a("s_add_u32 s31, s31, 1280")
    a("s_mov_b32 s32, 1120")
    a("s_branch K1_DEC_DONE")
    a.lab("K1_DEC_Q")
    a("s_sub_u32 s33, s2, 128")
    a("s_and_b32 s30, s33, 3")
    a("s_lshr_b32 s29, s33, 2")
    a("s_mul_i32 s31, s30, 320")
    a("s_mov_b32 s32, 0")
    a.lab("K1_DEC_DONE")
    srd(a, 20, 26, KV_SIZE, KV_OFF)
    a("s_cmp_lt_u32 s28, 4")
    a("s_cbranch_scc1 K1_COMPUTE")
    srd(a, 8, 4, 2621440)
    srd(a, 12, 6, 2457600)
    a("s_sub_u32 s28, s28, 4")
    a("s_lshl_b32 s33, s28, 6")
    a("v_add_u32 v9, s33, v1")
    a("s_movk_i32 s34, 3277")
    for i in range(5):
        a("v_add_u32 v10, %d, v9" % (i * 256))
        a("v_mul_u32_u24 v11, s34, v10")
        a("v_lshrrev_b32 v11, 16, v11")
        a("v_mul_u32_u24 v12, 20, v11")
        a("v_sub_u32 v12, v10, v12")
        a("v_mul_u32_u24 v13, 3840, v11")
        a("v_lshl_add_u32 v13, v12, 4, v13")
        a("v_add_u32 v13, s31, v13")
        a("v_cmp_lt_u32 vcc, 9, v12")
        a("v_mov_b32 v14, s32")
        a("s_nop 1")
        a("v_cndmask_b32 v14, 0, v14, vcc")
        a("v_add_u32 v%d, v13, v14" % (2 + i))
    a("s_lshl_b32 s33, s29, 7"); a("s_lshl_b32 s34, s28, 5"); a("s_add_u32 s33, s33, s34")
    a("v_lshrrev_b32 v10, 3, v1"); a("v_add_u32 v10, s33, v10"); a("v_mul_u32_u24 v10, 1280, v10")
    a("v_lshrrev_b32 v11, 4, v1"); a("v_and_b32 v12, 7, v1"); a("v_xor_b32 v12, v12, v11")
    a("v_lshl_add_u32 v7, v12, 4, v10")
    a("v_xor_b32 v12, 4, v12"); a("v_lshl_add_u32 v8, v12, 4, v10")
    a("s_lshl_b32 s35, s28, 10"); a("s_lshl_b32 s37, s28, 12")
    def dma_stage(c):
        st = (c % 4) * STG
        a("s_mov_b32 s43, %d" % (c * 64 * 3840))
        for i in range(5):
            a("s_add_u32 m0, s35, %d" % (st + i * 4096)); a("s_nop 0")
            if not NOLOAD: a("buffer_load_dwordx4 v%d, s[12:15], s43 offen lds" % (2 + i))
        for i in range(4):
            a("s_add_u32 m0, s37, %d" % (st + 20480 + i * 1024))
            a("s_mov_b32 s46, %d" % (c * 128 + i * 10240))
            if not NOLOAD: a("buffer_load_dwordx4 v%d, s[8:11], s46 offen lds" % (7 if i % 2 == 0 else 8))
    for c in range(3): dma_stage(c)
    a("s_cmp_ge_u32 s2, 8")
    a("s_cbranch_scc1 K1_NOZERO")
    for i in range(4): a("v_mov_b32 v%d, 0" % (16 + i))
    a("v_and_b32 v21, 255, v0")
    a("s_mul_i32 s33, s30, 6400")
    a("v_lshlrev_b32 v20, 4, v21")
    a("buffer_store_dwordx4 v[16:19], v20, s[20:23], s33 offen sc0 sc1")
    a("s_add_u32 s33, s33, 4096")
    a("v_cmp_gt_u32 vcc, 144, v21")
    a("s_and_saveexec_b64 s[40:41], vcc")
    a("buffer_store_dwordx4 v[16:19], v20, s[20:23], s33 offen sc0 sc1")
    a("s_mul_i32 s33, s30, 320"); a("s_add_u32 s33, s33, %d" % Z_REL)
    a("v_cmp_gt_u32 vcc, 20, v21")
    a("s_and_b64 exec, exec, vcc")
    a("buffer_store_dwordx4 v[16:19], v20, s[20:23], s33 offen sc0 sc1")
    a("s_mov_b64 exec, s[40:41]")
    a("s_waitcnt vmcnt(0)")
    a("v_mov_b32 v16, 1"); a("v_mov_b32 v17, 0")
    a("s_lshl_b32 s33, s30, 2")
    a("s_add_u32 s38, s24, s33"); a("s_addc_u32 s39, s25, 0")
    a("v_cmp_eq_u32 vcc, 0, v1")
    a("s_and_saveexec_b64 s[40:41], vcc")
    a("global_atomic_add v17, v16, s[38:39] sc1")
    a("s_mov_b64 exec, s[40:41]")
    a("s_waitcnt vmcnt(0)")
    a.lab("K1_NOZERO")
    for b in range(11):
        a("s_waitcnt vmcnt(%d)" % ((9 if b < 9 else 0) if not FREE else (45 if b < 10 else 0)))
        a("s_barrier")
        if b >= 1 and b + 2 < 10: dma_stage(b + 2)
    a("s_endpgm")
    a.lab("K1_COMPUTE")
    srd(a, 16, 26, 2621440)
    a("v_lshrrev_b32 v11, 5, v1")
    a("v_lshlrev_b32 v12, 5, v11"); a("v_bfe_u32 v13, v1, 2, 2"); a("v_add_u32 v12, v12, v13"); a("v_mul_u32_u24 v8, 320, v12")
    a("v_bfe_u32 v13, v1, 4, 1"); a("v_lshl_add_u32 v8, v13, 5, v8")
    a("v_and_b32 v13, 3, v1"); a("v_lshl_add_u32 v8, v13, 3, v8")
    a("v_and_b32 v10, 31, v1"); a("s_lshl_b32 s33, s28, 5"); a("v_add_u32 v12, s33, v10"); a("v_lshlrev_b32 v12, 7, v12")
    a("v_add_u32 v12, 20480, v12")
    a("v_bfe_u32 v13, v1, 1, 3"); a("v_lshlrev_b32 v14, 2, v11"); a("v_xor_b32 v13, v13, v14")
    for s_ in range(4):
        a("v_xor_b32 v14, %d, v13" % s_); a("v_lshl_add_u32 v%d, v14, 4, v12" % (2 + s_))
    BF = 16; XFr = 96
    for i in range(80): a("v_accvgpr_write_b32 a%d, 0" % i)
    a("s_mov_b32 s40, 0")
    a("s_mov_b32 s42, 0")
    a("s_cmp_ge_u32 s2, 128")
    a("s_cbranch_scc1 K1_QLOOP")
    stamp(a)
    def mainloop(swap, tag):
        def reads(s_, par, vb, vx):
            if NOLDS: return
            a("ds_read_b128 %s, v%d" % (vr(XFr + par * 4, 4), vx + s_))
            for t in range(5):
                for hh in range(2):
                    a("ds_read_b64_tr_b16 %s, v%d offset:%d" % (vr(BF + par * 20 + t * 4 + hh * 2, 2), vb, s_ * 2560 + hh * 1280 + t * 64))
        a("s_barrier")
        reads(0, 0, 8, 2); reads(1, 1, 8, 2)
        a("s_mov_b32 s41, %d" % STG)
        a.lab("K1_LOOP_" + tag)
        a("v_add_u32 v112, s40, v8")
        for s_ in range(2, 4): a("v_add_u32 v%d, s40, v%d" % (113 + s_, 2 + s_))
        a("v_add_u32 v117, s41, v8")
        for s_ in range(2): a("v_add_u32 v%d, s41, v%d" % (118 + s_, 2 + s_))
        a("s_barrier")
        for s_ in range(4):
            par = None
            cur = s_; nxt = (s_ + 2) % 4
            a("s_waitcnt lgkmcnt(11)")
            if s_ < 2: reads(s_ + 2, nxt, 112, 113)
            else:      reads(s_ - 2, nxt, 117, 118)
            for t in range(5):
                xf = vr(XFr + cur * 4, 4); bf = vr(BF + cur * 20 + 4 * t, 4)
                d = "a[%d:%d]" % (16 * t, 16 * t + 15)
                if NOMFMA: continue
                if swap: a("v_mfma_f32_32x32x16_bf16 %s, %s, %s, %s" % (d, bf, xf, d))
                else:    a("v_mfma_f32_32x32x16_bf16 %s, %s, %s, %s" % (d, xf, bf, d))
        a("s_mov_b32 s40, s41")
        a("s_add_u32 s41, s41, %d" % STG); a("s_cmp_eq_u32 s41, %d" % (4 * STG)); a("s_cselect_b32 s41, 0, s41")
        a("s_add_u32 s42, s42, 1"); a("s_cmp_lt_u32 s42, 10")
        a("s_cbranch_scc1 K1_LOOP_" + tag)
        a("s_waitcnt lgkmcnt(0)")
        a.nop(16)
        for i in range(80): a("v_accvgpr_read_b32 v%d, a%d" % (16 + i, i))
    ACC = 16
    mainloop(False, "KV")
    stamp(a)
    PK = 96; VV = 120
    for t in range(3):
        for p in range(8):
            phi_pair(a, "v%d" % (PK + t * 8 + p), "v%d" % (ACC + 16 * t + 2 * p), "v%d" % (ACC + 16 * t + 2 * p + 1), "v148", "v149", "v150", "v151")
    for t in range(2, 5):
        for p in range(8):
            a("v_cvt_pk_bf16_f32 v%d, v%d, v%d" % (VV + (t - 2) * 8 + p, ACC + 16 * t + 2 * p, ACC + 16 * t + 2 * p + 1))
    ONES = 144
    for i in range(4): a("v_mov_b32 v%d, 0x3f803f80" % (ONES + i))
    def R(T, n): return vr(16 + 16 * T, n) if T < 5 else "a[%d:%d]" % (16 * (T - 5), 16 * (T - 5) + n - 1)
    def Rq(T, q): return vr(16 + 16 * T + 4 * q, 4) if T < 5 else "a[%d:%d]" % (16 * (T - 5) + 4 * q, 16 * (T - 5) + 4 * q + 3)
    a("s_barrier")
    pairs = [(0, 2), (0, 3), (1, 3), (1, 4), (2, 4)]
    for T, (kt, vt) in enumerate(pairs):
        for hh in range(2):
            A_ = vr(VV + (vt - 2) * 8 + hh * 4, 4); B_ = vr(PK + kt * 8 + hh * 4, 4)
            a("v_mfma_f32_32x32x16_bf16 %s, %s, %s, %s" % (R(T, 16), A_, B_, "0" if hh == 0 else R(T, 16)))
    for kt in range(3):
        T = 5 + kt
        for hh in range(2):
            a("v_mfma_f32_32x32x16_bf16 %s, %s, %s, %s" % (R(T, 16), vr(ONES, 4), vr(PK + kt * 8 + hh * 4, 4), "0" if hh == 0 else R(T, 16)))
    a.nop(16)
    stamp(a)
    a("v_lshlrev_b32 v148, 4, v1")
    a("s_lshl_b32 s33, s28, 15")
    a("v_add_u32 v149, s33, v148")
    for T in range(8):
        for q in range(4):
            a("ds_write_b128 v149, %s offset:%d" % (Rq(T, q), T * 4096 + q * 1024))
    a("s_waitcnt lgkmcnt(0)")
    a("s_barrier")
    a("s_lshl_b32 s33, s28, 13")
    a("v_add_u32 v149, s33, v148")
    a("v_add_u32 v150, 0x10000, v149")
    for u in range(2):
        for q in range(4):
            for src in range(4):
                a("ds_read_b128 %s, v%d offset:%d" % (vr(16 + (q * 4 + src) * 4, 4), 149 + src // 2, (src % 2) * 32768 + u * 4096 + q * 1024))
        a("s_waitcnt lgkmcnt(0)")
        for q in range(4):
            b = 16 + q * 16
            for i in range(4):
                a("v_add_f32 v%d, v%d, v%d" % (b + i, b + i, b + 4 + i))
                a("v_add_f32 v%d, v%d, v%d" % (b + 8 + i, b + 8 + i, b + 12 + i))
                a("v_add_f32 v%d, v%d, v%d" % (96 + u * 16 + q * 4 + i, b + i, b + 8 + i))
    stamp(a)
    a("s_lshl_b32 s33, s30, 2")
    a("s_add_u32 s38, s24, s33"); a("s_addc_u32 s39, s25, 0")
    a("v_mov_b32 v150, 0")
    a.lab("K1_POLL")
    a("global_load_dword v151, v150, s[38:39] sc0 sc1")
    a("s_waitcnt vmcnt(0)")
    a("v_readfirstlane_b32 s33, v151")
    a("s_cmp_lt_u32 s33, 4")
    a("s_cbranch_scc1 K1_POLL")
    stamp(a)
    a("v_and_b32 v150, 31, v1")
    a("v_lshrrev_b32 v151, 5, v1"); a("v_lshlrev_b32 v151, 2, v151")
    a("s_mul_i32 s34, s30, 6400")
    a("s_movk_i32 s37, 3277")
    a("v_mov_b32 v158, %s" % OOB)
    for u in range(2):
        a("s_lshl_b32 s33, s28, 1"); a("s_add_u32 s33, s33, %d" % u)
        a("s_cmp_ge_u32 s33, 5")
        a("s_cbranch_scc1 K1_ZT%d" % u)
        a("s_lshr_b32 s35, s33, 1"); a("s_lshl_b32 s35, s35, 5")
        a("s_add_u32 s36, s33, 1"); a("s_lshr_b32 s36, s36, 1"); a("s_lshl_b32 s36, s36, 5"); a("s_sub_u32 s36, s36, 16")
        a("v_add_u32 v152, s35, v150")
        a("v_mul_u32_u24 v153, s37, v152"); a("v_lshrrev_b32 v153, 16, v153"); a("v_mul_u32_u24 v153, 20, v153")
        a("v_add_u32 v154, s36, v151")
        a("v_sub_u32 v155, v154, v153")
        a("v_mul_i32_i24 v156, 20, v154"); a("v_add_u32 v156, v156, v152"); a("v_sub_u32 v156, v156, v153"); a("v_lshlrev_b32 v156, 2, v156")
        for i in range(16):
            m = (i & 3) + 8 * (i >> 2)
            a("v_add_u32 v157, %d, v155" % m)
            a("v_cmp_gt_u32 vcc, 20, v157")
            a("v_add_u32 v157, %d, v156" % (80 * m))
            a("s_nop 0")
            a("v_cndmask_b32 v157, v158, v157, vcc")
            a("buffer_atomic_add_f32 v%d, v157, s[20:23], s34 offen" % (96 + u * 16 + i))
        a("s_branch K1_ZD%d" % u)
        a.lab("K1_ZT%d" % u)
        a("s_sub_u32 s35, s33, 5"); a("s_lshl_b32 s35, s35, 5")
        a("v_add_u32 v152, s35, v150")
        a("v_lshlrev_b32 v157, 2, v152")
        a("v_cmp_gt_u32 vcc, 80, v152")
        a("v_cmp_gt_u32 s[40:41], 32, v1")
        a("s_and_b64 vcc, vcc, s[40:41]")
        a("s_nop 1")
        a("v_cndmask_b32 v157, v158, v157, vcc")
        a("s_mul_i32 s35, s30, 320"); a("s_add_u32 s35, s35, %d" % Z_REL)
        a("buffer_atomic_add_f32 v%d, v157, s[20:23], s35 offen" % (96 + u * 16))
        a.lab("K1_ZD%d" % u)
    a("s_waitcnt vmcnt(0)")
    stamp(a)
    stamp_flush(a, 24, [(1,0), (9,0), (127,0)])
    a("s_endpgm")
    a.lab("K1_QLOOP")
    mainloop(True, "Q")
    a("s_lshl_b32 s33, s29, 7"); a("s_lshl_b32 s34, s28, 5"); a("s_add_u32 s33, s33, s34")
    a("v_and_b32 v10, 31, v1"); a("v_add_u32 v10, s33, v10")
    a("v_mul_u32_u24 v7, 1280, v10")
    a("v_lshrrev_b32 v11, 5, v1")
    a("v_lshl_add_u32 v7, v11, 3, v7")
    a("s_mul_i32 s33, s30, 320")
    for t in range(5):
        for qq in range(4):
            b = ACC + 16 * t + 4 * qq
            phi_pair(a, "v144", "v%d" % b, "v%d" % (b + 1), "v148", "v149", "v150", "v151")
            phi_pair(a, "v145", "v%d" % (b + 2), "v%d" % (b + 3), "v148", "v149", "v150", "v151")
            a("buffer_store_dwordx2 v[144:145], v7, s[16:19], s33 offen offset:%d" % (t * 64 + qq * 16))
            a("s_nop 1")
    a.lab("K1_END")
    a("s_endpgm")

def gen_k2(a):
    a.L.append(".globl %s\n.p2align 8\n.type %s,@function\n%s:" % (K2, K2, K2))
    a("s_cmp_ge_u32 s2, 256")
    a("s_cbranch_scc1 K2_END")
    stamp(a)
    a("s_load_dwordx4 s[4:7], s[0:1], 16")
    a("s_load_dwordx4 s[24:27], s[0:1], 32")
    a("v_and_b32 v1, 63, v0")
    a("v_lshrrev_b32 v2, 6, v0")
    a("s_nop 0")
    a("v_readfirstlane_b32 s28, v2")
    a("v_and_b32 v10, 15, v1")
    a("v_lshrrev_b32 v11, 4, v1")
    a("v_mov_b32 v15, %s" % OOB)
    a("s_waitcnt lgkmcnt(0)")
    stamp(a)
    srd(a, 8, 4, 819200)
    srd(a, 12, 6, 2621440)
    srd(a, 16, 26, 2621440)
    srd(a, 20, 26, KV_SIZE, KV_OFF)
    a("s_and_b32 s30, s2, 7")
    a("s_lshr_b32 s29, s2, 3")
    TMP = 16; AF = 112; OP = 160; ND = 16
    ts_list = [(0,0),(1,0),(1,1),(2,0),(2,1),(3,1),(3,2),(4,1),(4,2)]
    a("s_mul_i32 s36, s28, 6400")
    a("s_mul_i32 s37, s28, 320"); a("s_add_u32 s37, s37, %d" % Z_REL)
    a("s_mul_i32 s38, s28, 160")
    a("s_mul_i32 s46, s28, 7168"); a("s_add_u32 s46, s46, 106496")
    a("v_lshlrev_b32 v2, 4, v1")
    for i in range(6):
        a("s_add_u32 m0, s46, %d" % (i * 1024))
        a("s_add_u32 s39, s36, %d" % (i * 1024))
        a("buffer_load_dwordx4 v2, s[20:23], s39 offen lds")
    a("v_add_u32 v3, s36, v2"); a("v_add_u32 v3, 6144, v3")
    a("v_add_u32 v4, s37, v2"); a("v_add_u32 v4, -256, v4")
    a("v_cmp_gt_u32 vcc, 16, v1"); a("s_nop 1"); a("v_cndmask_b32 v3, v4, v3, vcc")
    a("v_cmp_gt_u32 vcc, 36, v1"); a("s_nop 1"); a("v_cndmask_b32 v3, v15, v3, vcc")
    a("s_add_u32 m0, s46, 6144"); a("s_nop 0")
    a("buffer_load_dwordx4 v3, s[20:23], 0 offen lds")
    a("s_lshl_b32 s33, s29, 6"); a("v_add_u32 v12, s33, v10"); a("v_mul_u32_u24 v9, 1280, v12"); a("v_lshl_add_u32 v9, v11, 4, v9")
    for nt in range(4):
        a("s_add_u32 s39, s38, %d" % (nt * 16 * 1280))
        for s_ in range(3):
            a("buffer_load_dwordx4 a[%d:%d], v9, s[16:19], s39 offen offset:%d" % ((nt * 3 + s_) * 4, (nt * 3 + s_) * 4 + 3, s_ * 64))
    a("s_mul_i32 s33, s28, 80*1280"); a("s_mul_i32 s34, s30, 160"); a("s_add_u32 s33, s33, s34")
    a("s_movk_i32 s34, 6554")
    for b in range(5):
        a("v_add_u32 v2, %d, v1" % (64 * b))
        a("v_mul_u32_u24 v3, s34, v2"); a("v_lshrrev_b32 v3, 16, v3")
        a("v_mul_u32_u24 v4, 10, v3"); a("v_sub_u32 v4, v2, v4")
        a("v_mul_u32_u24 v5, 1280, v3"); a("v_lshl_add_u32 v5, v4, 4, v5")
        a("v_add_u32 v%d, s33, v5" % (160 + b))
    a("s_mul_i32 s35, s28, 13312")
    for i in range(13):
        aa, b = i // 5, i % 5
        a("s_add_u32 m0, s35, %d" % (i * 1024))
        a("s_mov_b32 s39, %d" % (aa * 32 * 1280))
        a("buffer_load_dwordx4 v%d, s[8:11], s39 offen lds" % (160 + b))
    a("v_cmp_eq_u32 s[40:41], 0, v11"); a("v_cmp_gt_u32 s[42:43], 2, v11"); a("v_cmp_gt_u32 s[44:45], 3, v11")
    for nt in range(4):
        a("v_mov_b32 v%d, 0" % (OP + (2 * 4 + nt) * 4 + 2)); a("v_mov_b32 v%d, 0" % (OP + (2 * 4 + nt) * 4 + 3))
    frs = [("kv", t, s_) for (t, s_) in ts_list] + [("z", 0, s_) for s_ in range(3)]
    stamp(a)
    a("s_waitcnt vmcnt(25)")
    stamp(a)
    a("v_mov_b32 v14, 6720")
    lastt = None
    for j, (ty, t, s_) in enumerate(frs):
        if ty == "kv":
            if lastt != t:
                a("v_add_u32 v2, %d, v10" % (16 * t))
                a("v_mul_u32_u24 v3, 3277, v2"); a("v_lshrrev_b32 v3, 16, v3"); a("v_mul_u32_u24 v3, 20, v3")
                a("v_mul_u32_u24 v2, 20, v2"); a("v_sub_u32 v7, v2, v3")
                a("v_lshlrev_b32 v8, 3, v11"); a("v_sub_u32 v8, v8, v3")
                lastt = t
        else:
            if lastt != "z":
                a("v_and_b32 v3, 3, v10"); a("v_mul_u32_u24 v3, 20, v3")
                a("v_mov_b32 v7, 1600"); a("v_lshlrev_b32 v8, 3, v11"); a("v_sub_u32 v8, v8, v3")
                lastt = "z"
        a("v_add_u32 v4, %d, v8" % (32 * s_))
        a("v_lshlrev_b32 v5, 3, v11"); a("v_add3_u32 v5, v5, v7, %d" % (32 * s_))
        a("v_lshlrev_b32 v5, 2, v5")
        a("v_cmp_gt_u32 vcc, 20, v4"); a("v_add_u32 v6, 16, v5"); a("v_add_u32 v4, 4, v4"); a("v_cndmask_b32 v5, v14, v5, vcc")
        a("v_cmp_gt_u32 vcc, 20, v4"); a("v_add_u32 v5, s46, v5"); a("s_nop 0"); a("v_cndmask_b32 v6, v14, v6, vcc")
        a("v_add_u32 v6, s46, v6")
        a("ds_read_b128 %s, v5" % vr(TMP + 8 * j, 4))
        a("ds_read_b128 %s, v6" % vr(TMP + 8 * j + 4, 4))
    a("s_waitcnt lgkmcnt(0)")
    for j in range(12):
        for p in range(4):
            a("v_cvt_pk_bf16_f32 v%d, v%d, v%d" % (AF + 4 * j + p, TMP + 8 * j + 2 * p, TMP + 8 * j + 2 * p + 1))
    stamp(a)
    a("s_waitcnt vmcnt(13)")
    for nt in range(4):
        Bf = lambda s_: "a[%d:%d]" % ((nt * 3 + s_) * 4, (nt * 3 + s_) * 4 + 3)
        nd = ND + (nt % 2) * 24
        for s_ in range(3):
            a("v_mfma_f32_16x16x32_bf16 %s, %s, %s, %s" % (vr(nd, 4), vr(AF + 4 * (9 + s_), 4), Bf(s_), "0" if s_ == 0 else vr(nd, 4)))
        seen = set()
        for j, (t, s_) in enumerate(ts_list):
            d = vr(nd + 4 + 4 * t, 4)
            a("v_mfma_f32_16x16x32_bf16 %s, %s, %s, %s" % (d, vr(AF + 4 * j, 4), Bf(s_), d if t in seen else "0"))
            seen.add(t)
        a.nop(10)
        for i in range(4):
            a("v_add_f32 v%d, 0x358637bd, v%d" % (nd + i, nd + i))
        for i in range(4):
            a("v_rcp_f32 v%d, v%d" % (nd + i, nd + i))
        a("s_nop 1")
        a("v_mov_b32 v2, v%d" % nd)
        a("v_cndmask_b32 v3, v%d, v%d, s[40:41]" % (nd + 1, nd))
        a("v_cndmask_b32 v4, v%d, v%d, s[42:43]" % (nd + 2, nd + 1))
        a("v_cndmask_b32 v5, v%d, v%d, s[44:45]" % (nd + 3, nd + 2))
        a("v_mov_b32 v6, v%d" % (nd + 3))
        for t in range(5):
            for i in range(4):
                a("v_mul_f32 v%d, v%d, v%d" % (nd + 4 + 4 * t + i, nd + 4 + 4 * t + i, 2 + t))
            ks = t // 2; hf = t % 2
            base = OP + (ks * 4 + nt) * 4 + hf * 2
            a("v_cvt_pk_bf16_f32 v%d, v%d, v%d" % (base, nd + 4 + 4 * t, nd + 4 + 4 * t + 1))
            a("v_cvt_pk_bf16_f32 v%d, v%d, v%d" % (base + 1, nd + 4 + 4 * t + 2, nd + 4 + 4 * t + 3))
    stamp(a)
    ACC = 16; WF = 96
    a("v_lshrrev_b32 v12, 2, v10"); a("v_lshl_add_u32 v12, v11, 2, v12"); a("v_mul_u32_u24 v2, 160, v12")
    a("v_and_b32 v12, 3, v1"); a("v_lshl_add_u32 v2, v12, 3, v2"); a("v_add_u32 v2, s35, v2")
    a("s_waitcnt vmcnt(0)")
    for ks in range(3):
        for mt in range(5):
            for hf in range(2):
                T = 2 * ks + hf
                if T == 5: T = 4
                a("ds_read_b64_tr_b16 %s, v2 offset:%d" % (vr(WF + ks * 20 + 4 * mt + 2 * hf, 2), T * 16 * 160 + mt * 32))
    for ks in range(3):
        a("s_waitcnt lgkmcnt(%d)" % (10 if ks < 2 else 0))
        for mt in range(5):
            for nt in range(4):
                d = vr(ACC + (mt * 4 + nt) * 4, 4)
                a("v_mfma_f32_16x16x32_bf16 %s, %s, %s, %s" % (d, vr(WF + ks * 20 + 4 * mt, 4), vr(OP + (ks * 4 + nt) * 4, 4), "0" if ks == 0 else d))
    a.nop(10)
    stamp(a)
    a("s_barrier")
    stamp(a)
    a("v_lshlrev_b32 v3, 4, v1")
    a("s_mul_i32 s33, s28, 20480")
    a("v_add_u32 v4, s33, v3")
    for j in range(20):
        a("ds_write_b128 v4, %s offset:%d" % (vr(ACC + 4 * j, 4), j * 1024))
    a("s_waitcnt lgkmcnt(0)")
    stamp(a)
    a("s_barrier")
    stamp(a)
    a("s_lshl_b32 s33, s28, 10")
    a("v_add_u32 v4, s33, v3")
    a("v_add_u32 v5, 61440, v4"); a("v_add_u32 v6, 61440, v5")
    for jj in range(3):
        if jj == 2:
            a("s_cmp_ge_u32 s28, 4"); a("s_cbranch_scc1 K2_FIN")
        for src in range(8):
            a("ds_read_b128 %s, v%d offset:%d" % (vr(16 + 4 * src, 4), 4 + src // 3, (src % 3) * 20480 + jj * 8192))
        a("s_add_u32 s33, s28, %d" % (jj * 8))
        a("s_lshr_b32 s34, s33, 2"); a("s_and_b32 s35, s33, 3")
        a("s_lshl_b32 s36, s29, 6"); a("s_lshl_b32 s37, s35, 4"); a("s_add_u32 s36, s36, s37")
        a("v_add_u32 v50, s36, v10"); a("v_mul_u32_u24 v50, 1280, v50")
        a("v_lshl_add_u32 v50, v11, 3, v50")
        a("s_mul_i32 s36, s30, 160"); a("s_lshl_b32 s37, s34, 5"); a("s_add_u32 s36, s36, s37")
        a("s_waitcnt lgkmcnt(0)")
        for i in range(4):
            for src in range(1, 8):
                a("v_add_f32 v%d, v%d, v%d" % (16 + i, 16 + i, 16 + 4 * src + i))
        a("v_cvt_pk_bf16_f32 v48, v16, v17"); a("v_cvt_pk_bf16_f32 v49, v18, v19")
        a("buffer_store_dwordx2 v[48:49], v50, s[12:15], s36 offen")
        a("s_nop 1")
    a.lab("K2_FIN")
    stamp(a)
    a("s_waitcnt vmcnt(0)")
    stamp(a)
    stamp_flush(a, 24, [(9,0), (9,3), (9,4), (9,7)])
    a.lab("K2_END")
    a("s_endpgm")

def kd(name, vg, sg=96, ag=0):
    return """.amdhsa_kernel %s
  .amdhsa_next_free_vgpr %d
  .amdhsa_next_free_sgpr %d
  .amdhsa_accum_offset %d
  .amdhsa_group_segment_fixed_size 0
  .amdhsa_kernarg_size 48
  .amdhsa_user_sgpr_count 2
  .amdhsa_user_sgpr_kernarg_segment_ptr 1
  .amdhsa_system_sgpr_workgroup_id_x 1
.end_amdhsa_kernel
""" % (name, (vg + 3) // 4 * 4 + ag, sg, (vg + 3) // 4 * 4)

if __name__ == "__main__":
    hdr = open("standalone__linear_attn_block__prompt.s.ref").read().split("; Override launch")[0]
    out = hdr
    out += "; @launch kernel=%s grid=(192,1,1) block=(512,1,1) lds=147456\n" % K1
    out += "; @launch kernel=%s grid=(256,1,1) block=(512,1,1) lds=163840\n" % K2
    out += '.amdgcn_target "amdgcn-amd-amdhsa--gfx950"\n.text\n'
    gen_k1(a)
    gen_k2(a)
    out += "\n".join(a.L) + "\n"
    out += '.section .rodata,"a"\n.p2align 6\n' + kd(K1, 176, ag=80) + kd(K2, 208, ag=48)
    open(sys.argv[1] if len(sys.argv) > 1 else "k.s", "w").write(out)
```

```python
import sys, os

class A:
    def __init__(s): s.L = []
    def __call__(s, x): s.L.append("    " + x)
    def lab(s, x): s.L.append(x + ":")
    def nop(s, n):
        while n > 0:
            k = min(n, 16); s("s_nop %d" % (k - 1)); n -= k

a = A()
NOMFMA = int(os.environ.get("NOMFMA", "0"))
NOLOAD = int(os.environ.get("NOLOAD", "0"))
NOLDS = int(os.environ.get("NOLDS", "0"))
FREE = int(os.environ.get("FREE", "0"))
STAMP = int(os.environ.get("STAMP", "0"))
_st = [0]
def stamp(a):
    if STAMP:
        a("s_memtime s[%d:%d]" % (60 + 2 * _st[0], 61 + 2 * _st[0])); _st[0] += 1
def stamp_flush(a, dbg_lo, wgs, t0="v2", t1="v3"):
    if STAMP:
        n = _st[0]
        lab = "SF%d" % len(a.L)
        a("s_waitcnt lgkmcnt(0)")
        for k, (wg, wv) in enumerate(wgs):
            a("s_cmp_lg_u32 s2, %d" % wg); a("s_cbranch_scc1 %s_%d" % (lab, k))
            a("s_cmp_lg_u32 s28, %d" % wv); a("s_cbranch_scc1 %s_%d" % (lab, k))
            for i in range(n):
                a("v_mov_b32 %s, s%d" % (t0, 60 + 2 * i)); a("v_mov_b32 %s, %d" % (t1, k * 64 + i * 4))
                a("global_store_dword %s, %s, s[%d:%d]" % (t1, t0, dbg_lo, dbg_lo + 1)); a("s_nop 1")
            a.lab("%s_%d" % (lab, k))
        _st[0] = 0

KV_OFF = 0x300000
Z_REL = 51200
KV_SIZE = 53760
K1 = "standalone__linear_attn_block__prompt_kernel"
K2 = "linear_attn_out_kernel"
OOB = "0x7ffffff0"

def vr(b, n): return "v[%d:%d]" % (b, b + n - 1)

def srd(a, d, lo, size, add=0):
    if add:
        a("s_add_u32 s%d, s%d, 0x%x" % (d, lo, add)); a("s_addc_u32 s%d, s%d, 0" % (d + 1, lo + 1))
    else:
        a("s_mov_b32 s%d, s%d" % (d, lo)); a("s_mov_b32 s%d, s%d" % (d + 1, lo + 1))
    a("s_mov_b32 s%d, 0x%x" % (d + 2, size)); a("s_mov_b32 s%d, 0x00020000" % (d + 3))

def phi_pair(a, dst, x0, x1, t0, t1, t2, t3):
    a("v_min_f32 %s, 0, %s" % (t2, x0))
    a("v_min_f32 %s, 0, %s" % (t3, x1))
    a("v_mul_f32 %s, 0x3fb8aa3b, %s" % (t2, t2))
    a("v_mul_f32 %s, 0x3fb8aa3b, %s" % (t3, t3))
    a("v_exp_f32 %s, %s" % (t2, t2))
    a("v_exp_f32 %s, %s" % (t3, t3))
    a("v_max_f32 %s, 0, %s" % (t1, x0))
    a("v_max_f32 %s, 0, %s" % (t0, x1))
    a("v_add_f32 %s, %s, %s" % (t1, t1, t2))
    a("v_add_f32 %s, %s, %s" % (t0, t0, t3))
    a("v_add_f32 %s, 0x358637bd, %s" % (t1, t1))
    a("v_add_f32 %s, 0x358637bd, %s" % (t0, t0))
    a("v_cvt_pk_bf16_f32 %s, %s, %s" % (dst, t1, t0))

STG = 36864
def gen_k1(a):
    a.L.append(".globl %s\n.p2align 8\n.type %s,@function\n%s:" % (K1, K1, K1))
    a("s_cmp_ge_u32 s2, 192")
    a("s_cbranch_scc1 K1_END")
    stamp(a)
    a("s_load_dwordx4 s[4:7], s[0:1], 0")
    a("s_load_dwordx4 s[24:27], s[0:1], 32")
    a("v_and_b32 v1, 63, v0")
    a("v_lshrrev_b32 v2, 6, v0")
    a("s_nop 0")
    a("v_readfirstlane_b32 s28, v2")
    a("s_waitcnt lgkmcnt(0)")
    a("s_and_b32 s33, s2, 7"); a("s_lshr_b32 s34, s2, 3")
    a("s_and_b32 s29, s33, 1"); a("s_lshl_b32 s29, s29, 3"); a("s_and_b32 s35, s34, 7"); a("s_add_u32 s29, s29, s35")
    a("s_lshr_b32 s34, s34, 3")
    a("s_lshr_b32 s33, s33, 1")
    a("s_cmp_eq_u32 s34, 2")
    a("s_cselect_b32 s48, 1, 0")
    a("s_cbranch_scc1 K1_DEC_Q")
    a("s_lshl_b32 s30, s33, 1"); a("s_add_u32 s30, s30, s34")
    a("s_mul_i32 s31, s30, 160")
    a("s_add_u32 s31, s31, 1280")
    a("s_mov_b32 s32, 1120")
    a("s_branch K1_DEC_DONE")
    a.lab("K1_DEC_Q")
    a("s_mov_b32 s30, s33")
    a("s_mul_i32 s31, s30, 320")
    a("s_mov_b32 s32, 0")
    a.lab("K1_DEC_DONE")
    srd(a, 20, 26, KV_SIZE, KV_OFF)
    a("s_cmp_lt_u32 s28, 4")
    a("s_cbranch_scc1 K1_COMPUTE")
    srd(a, 8, 4, 2621440)
    srd(a, 12, 6, 2457600)
    a("s_sub_u32 s28, s28, 4")
    a("s_lshl_b32 s33, s28, 6")
    a("v_add_u32 v9, s33, v1")
    a("s_movk_i32 s34, 3277")
    for i in range(5):
        a("v_add_u32 v10, %d, v9" % (i * 256))
        a("v_mul_u32_u24 v11, s34, v10")
        a("v_lshrrev_b32 v11, 16, v11")
        a("v_mul_u32_u24 v12, 20, v11")
        a("v_sub_u32 v12, v10, v12")
        a("v_mul_u32_u24 v13, 3840, v11")
        a("v_lshl_add_u32 v13, v12, 4, v13")
        a("v_add_u32 v13, s31, v13")
        a("v_cmp_lt_u32 vcc, 9, v12")
        a("v_mov_b32 v14, s32")
        a("s_nop 1")
        a("v_cndmask_b32 v14, 0, v14, vcc")
        a("v_add_u32 v%d, v13, v14" % (2 + i))
    a("s_lshl_b32 s33, s29, 7"); a("s_lshl_b32 s34, s28, 5"); a("s_add_u32 s33, s33, s34")
    a("v_lshrrev_b32 v10, 3, v1"); a("v_add_u32 v10, s33, v10"); a("v_mul_u32_u24 v10, 1280, v10")
    a("v_lshrrev_b32 v11, 4, v1"); a("v_and_b32 v12, 7, v1"); a("v_xor_b32 v12, v12, v11")
    a("v_lshl_add_u32 v7, v12, 4, v10")
    a("v_xor_b32 v12, 4, v12"); a("v_lshl_add_u32 v8, v12, 4, v10")
    a("s_lshl_b32 s35, s28, 10"); a("s_lshl_b32 s37, s28, 12")
    def dma_stage(c):
        st = (c % 4) * STG
        a("s_mov_b32 s43, %d" % (c * 64 * 3840))
        for i in range(5):
            a("s_add_u32 m0, s35, %d" % (st + i * 4096)); a("s_nop 0")
            if not NOLOAD: a("buffer_load_dwordx4 v%d, s[12:15], s43 offen lds" % (2 + i))
        for i in range(4):
            a("s_add_u32 m0, s37, %d" % (st + 20480 + i * 1024))
            a("s_mov_b32 s46, %d" % (c * 128 + i * 10240))
            if not NOLOAD: a("buffer_load_dwordx4 v%d, s[8:11], s46 offen lds" % (7 if i % 2 == 0 else 8))
    for c in range(3): dma_stage(c)
    a("s_or_b32 s33, s29, s48"); a("s_cmp_lg_u32 s33, 0")
    a("s_cbranch_scc1 K1_NOZERO")
    for i in range(4): a("v_mov_b32 v%d, 0" % (16 + i))
    a("v_and_b32 v21, 255, v0")
    a("s_mul_i32 s33, s30, 6400")
    a("v_lshlrev_b32 v20, 4, v21")
    a("buffer_store_dwordx4 v[16:19], v20, s[20:23], s33 offen sc0 sc1")
    a("s_add_u32 s33, s33, 4096")
    a("v_cmp_gt_u32 vcc, 144, v21")
    a("s_and_saveexec_b64 s[40:41], vcc")
    a("buffer_store_dwordx4 v[16:19], v20, s[20:23], s33 offen sc0 sc1")
    a("s_mul_i32 s33, s30, 320"); a("s_add_u32 s33, s33, %d" % Z_REL)
    a("v_cmp_gt_u32 vcc, 20, v21")
    a("s_and_b64 exec, exec, vcc")
    a("buffer_store_dwordx4 v[16:19], v20, s[20:23], s33 offen sc0 sc1")
    a("s_mov_b64 exec, s[40:41]")
    a("s_waitcnt vmcnt(0)")
    a("v_mov_b32 v16, 1"); a("v_mov_b32 v17, 0")
    a("s_lshl_b32 s33, s30, 2")
    a("s_add_u32 s38, s24, s33"); a("s_addc_u32 s39, s25, 0")
    a("v_cmp_eq_u32 vcc, 0, v1")
    a("s_and_saveexec_b64 s[40:41], vcc")
    a("global_atomic_add v17, v16, s[38:39] sc1")
    a("s_mov_b64 exec, s[40:41]")
    a("s_waitcnt vmcnt(0)")
    a.lab("K1_NOZERO")
    for b in range(11):
        a("s_waitcnt vmcnt(%d)" % ((9 if b < 9 else 0) if not FREE else (45 if b < 10 else 0)))
        a("s_barrier")
        if b >= 1 and b + 2 < 10: dma_stage(b + 2)
    a("s_endpgm")
    a.lab("K1_COMPUTE")
    srd(a, 16, 26, 2621440)
    a("v_lshrrev_b32 v11, 5, v1")
    a("v_lshlrev_b32 v12, 5, v11"); a("v_bfe_u32 v13, v1, 2, 2"); a("v_add_u32 v12, v12, v13"); a("v_mul_u32_u24 v8, 320, v12")
    a("v_bfe_u32 v13, v1, 4, 1"); a("v_lshl_add_u32 v8, v13, 5, v8")
    a("v_and_b32 v13, 3, v1"); a("v_lshl_add_u32 v8, v13, 3, v8")
    a("v_and_b32 v10, 31, v1"); a("s_lshl_b32 s33, s28, 5"); a("v_add_u32 v12, s33, v10"); a("v_lshlrev_b32 v12, 7, v12")
    a("v_add_u32 v12, 20480, v12")
    a("v_bfe_u32 v13, v1, 1, 3"); a("v_lshlrev_b32 v14, 2, v11"); a("v_xor_b32 v13, v13, v14")
    for s_ in range(4):
        a("v_xor_b32 v14, %d, v13" % s_); a("v_lshl_add_u32 v%d, v14, 4, v12" % (2 + s_))
    BF = 16; XFr = 96
    for i in range(80): a("v_accvgpr_write_b32 a%d, 0" % i)
    a("s_mov_b32 s40, 0")
    a("s_mov_b32 s42, 0")
    a("s_cmp_lg_u32 s48, 0")
    a("s_cbranch_scc1 K1_QLOOP")
    stamp(a)
    def mainloop(swap, tag):
        def reads(s_, par, vb, vx):
            if NOLDS: return
            a("ds_read_b128 %s, v%d" % (vr(XFr + par * 4, 4), vx + s_))
            for t in range(5):
                for hh in range(2):
                    a("ds_read_b64_tr_b16 %s, v%d offset:%d" % (vr(BF + par * 20 + t * 4 + hh * 2, 2), vb, s_ * 2560 + hh * 1280 + t * 64))
        a("s_barrier")
        reads(0, 0, 8, 2); reads(1, 1, 8, 2)
        a("s_mov_b32 s41, %d" % STG)
        a.lab("K1_LOOP_" + tag)
        a("v_add_u32 v112, s40, v8")
        for s_ in range(2, 4): a("v_add_u32 v%d, s40, v%d" % (113 + s_, 2 + s_))
        a("v_add_u32 v117, s41, v8")
        for s_ in range(2): a("v_add_u32 v%d, s41, v%d" % (118 + s_, 2 + s_))
        a("s_barrier")
        for s_ in range(4):
            par = None
            cur = s_; nxt = (s_ + 2) % 4
            a("s_waitcnt lgkmcnt(11)")
            if s_ < 2: reads(s_ + 2, nxt, 112, 113)
            else:      reads(s_ - 2, nxt, 117, 118)
            for t in range(5):
                xf = vr(XFr + cur * 4, 4); bf = vr(BF + cur * 20 + 4 * t, 4)
                d = "a[%d:%d]" % (16 * t, 16 * t + 15)
                if NOMFMA: continue
                if swap: a("v_mfma_f32_32x32x16_bf16 %s, %s, %s, %s" % (d, bf, xf, d))
                else:    a("v_mfma_f32_32x32x16_bf16 %s, %s, %s, %s" % (d, xf, bf, d))
        a("s_mov_b32 s40, s41")
        a("s_add_u32 s41, s41, %d" % STG); a("s_cmp_eq_u32 s41, %d" % (4 * STG)); a("s_cselect_b32 s41, 0, s41")
        a("s_add_u32 s42, s42, 1"); a("s_cmp_lt_u32 s42, 10")
        a("s_cbranch_scc1 K1_LOOP_" + tag)
        a("s_waitcnt lgkmcnt(0)")
        a.nop(16)
        for i in range(80): a("v_accvgpr_read_b32 v%d, a%d" % (16 + i, i))
    ACC = 16
    mainloop(False, "KV")
    stamp(a)
    PK = 96; VV = 120
    for t in range(3):
        for p in range(8):
            phi_pair(a, "v%d" % (PK + t * 8 + p), "v%d" % (ACC + 16 * t + 2 * p), "v%d" % (ACC + 16 * t + 2 * p + 1), "v148", "v149", "v150", "v151")
    for t in range(2, 5):
        for p in range(8):
            a("v_cvt_pk_bf16_f32 v%d, v%d, v%d" % (VV + (t - 2) * 8 + p, ACC + 16 * t + 2 * p, ACC + 16 * t + 2 * p + 1))
    ONES = 144
    for i in range(4): a("v_mov_b32 v%d, 0x3f803f80" % (ONES + i))
    def R(T, n): return vr(16 + 16 * T, n) if T < 5 else "a[%d:%d]" % (16 * (T - 5), 16 * (T - 5) + n - 1)
    def Rq(T, q): return vr(16 + 16 * T + 4 * q, 4) if T < 5 else "a[%d:%d]" % (16 * (T - 5) + 4 * q, 16 * (T - 5) + 4 * q + 3)
    a("s_barrier")
    pairs = [(0, 2), (0, 3), (1, 3), (1, 4), (2, 4)]
    a("v_lshlrev_b32 v148, 4, v1")
    a("s_mul_i32 s33, s28, 12288")
    a("v_add_u32 v149, s33, v148")
    for qd in range(12):
        a("ds_write_b128 v149, %s offset:%d" % (vr(PK + 4 * qd, 4), qd * 1024))
    a("s_waitcnt lgkmcnt(0)")
    a("s_barrier")
    stamp(a)
    for u in range(2):
        a("s_lshl_b32 s33, s28, 1"); a("s_add_u32 s33, s33, %d" % u)
        a("s_cmp_ge_u32 s33, 5")
        a("s_cbranch_scc1 K1_RZ%d" % u)
        a("s_lshr_b32 s35, s33, 1"); a("s_lshl_b32 s35, s35, 11")
        a("s_add_u32 s36, s33, 1"); a("s_lshr_b32 s36, s36, 1"); a("s_lshl_b32 s36, s36, 11"); a("s_add_u32 s36, s36, 6144")
        a("v_add_u32 v149, s35, v148"); a("v_add_u32 v150, s36, v148")
        for src in range(4):
            for hh in range(2):
                a("ds_read_b128 %s, v150 offset:%d" % (vr(16 + (src * 2 + hh) * 8, 4), src * 12288 + hh * 1024))
                a("ds_read_b128 %s, v149 offset:%d" % (vr(16 + (src * 2 + hh) * 8 + 4, 4), src * 12288 + hh * 1024))
        for k in range(8):
            a("s_waitcnt lgkmcnt(%d)" % (14 - 2 * k))
            a("v_mfma_f32_32x32x16_bf16 %s, %s, %s, %s" % (vr(96 + u * 16, 16), vr(16 + k * 8, 4), vr(16 + k * 8 + 4, 4), "0" if k == 0 else vr(96 + u * 16, 16)))
        a("s_branch K1_RD%d" % u)
        a.lab("K1_RZ%d" % u)
        a("s_sub_u32 s35, s33, 5"); a("s_lshl_b32 s35, s35, 11")
        a("v_add_u32 v149, s35, v148")
        for src in range(4):
            for hh in range(2):
                a("ds_read_b128 %s, v149 offset:%d" % (vr(16 + (src * 2 + hh) * 8 + 4, 4), src * 12288 + hh * 1024))
        for k in range(8):
            a("s_waitcnt lgkmcnt(%d)" % (7 - k))
            a("v_mfma_f32_32x32x16_bf16 %s, %s, %s, %s" % (vr(96 + u * 16, 16), vr(ONES, 4), vr(16 + k * 8 + 4, 4), "0" if k == 0 else vr(96 + u * 16, 16)))
        a.lab("K1_RD%d" % u)
    a.nop(16)
    stamp(a)
    a("s_lshl_b32 s33, s30, 2")
    a("s_add_u32 s38, s24, s33"); a("s_addc_u32 s39, s25, 0")
    a("v_mov_b32 v150, 0")
    a.lab("K1_POLL")
    a("global_load_dword v151, v150, s[38:39] sc0 sc1")
    a("s_waitcnt vmcnt(0)")
    a("v_readfirstlane_b32 s33, v151")
    a("s_cmp_lt_u32 s33, 4")
    a("s_cbranch_scc1 K1_POLL")
    stamp(a)
    a("v_and_b32 v150, 31, v1")
    a("v_lshrrev_b32 v151, 5, v1"); a("v_lshlrev_b32 v151, 2, v151")
    a("s_mul_i32 s34, s30, 6400")
    a("s_movk_i32 s37, 3277")
    a("v_mov_b32 v158, %s" % OOB)
    for u in range(2):
        a("s_lshl_b32 s33, s28, 1"); a("s_add_u32 s33, s33, %d" % u)
        a("s_cmp_ge_u32 s33, 5")
        a("s_cbranch_scc1 K1_ZT%d" % u)
        a("s_lshr_b32 s35, s33, 1"); a("s_lshl_b32 s35, s35, 5")
        a("s_add_u32 s36, s33, 1"); a("s_lshr_b32 s36, s36, 1"); a("s_lshl_b32 s36, s36, 5"); a("s_sub_u32 s36, s36, 16")
        a("v_add_u32 v152, s35, v150")
        a("v_mul_u32_u24 v153, s37, v152"); a("v_lshrrev_b32 v153, 16, v153"); a("v_mul_u32_u24 v153, 20, v153")
        a("v_add_u32 v154, s36, v151")
        a("v_sub_u32 v155, v154, v153")
        a("v_mul_i32_i24 v156, 20, v154"); a("v_add_u32 v156, v156, v152"); a("v_sub_u32 v156, v156, v153"); a("v_lshlrev_b32 v156, 2, v156")
        for i in range(16):
            m = (i & 3) + 8 * (i >> 2)
            a("v_add_u32 v157, %d, v155" % m)
            a("v_cmp_gt_u32 vcc, 20, v157")
            a("v_add_u32 v157, %d, v156" % (80 * m))
            a("s_nop 0")
            a("v_cndmask_b32 v157, v158, v157, vcc")
            a("buffer_atomic_add_f32 v%d, v157, s[20:23], s34 offen" % (96 + u * 16 + i))
        a("s_branch K1_ZD%d" % u)
        a.lab("K1_ZT%d" % u)
        a("s_sub_u32 s35, s33, 5"); a("s_lshl_b32 s35, s35, 5")
        a("v_add_u32 v152, s35, v150")
        a("v_lshlrev_b32 v157, 2, v152")
        a("v_cmp_gt_u32 vcc, 80, v152")
        a("v_cmp_gt_u32 s[40:41], 32, v1")
        a("s_and_b64 vcc, vcc, s[40:41]")
        a("s_nop 1")
        a("v_cndmask_b32 v157, v158, v157, vcc")
        a("s_mul_i32 s35, s30, 320"); a("s_add_u32 s35, s35, %d" % Z_REL)
        a("buffer_atomic_add_f32 v%d, v157, s[20:23], s35 offen" % (96 + u * 16))
        a.lab("K1_ZD%d" % u)
    if STAMP: a("s_waitcnt vmcnt(0)")
    stamp(a)
    stamp_flush(a, 24, [(1,0), (9,0), (127,0)])
    a("s_endpgm")
    a.lab("K1_QLOOP")
    mainloop(True, "Q")
    a("s_lshl_b32 s33, s29, 7"); a("s_lshl_b32 s34, s28, 5"); a("s_add_u32 s33, s33, s34")
    a("v_and_b32 v10, 31, v1"); a("v_add_u32 v10, s33, v10")
    a("v_mul_u32_u24 v7, 1280, v10")
    a("v_lshrrev_b32 v11, 5, v1")
    a("v_lshl_add_u32 v7, v11, 3, v7")
    a("s_mul_i32 s33, s30, 320")
    for t in range(5):
        for qq in range(4):
            b = ACC + 16 * t + 4 * qq
            phi_pair(a, "v144", "v%d" % b, "v%d" % (b + 1), "v148", "v149", "v150", "v151")
            phi_pair(a, "v145", "v%d" % (b + 2), "v%d" % (b + 3), "v148", "v149", "v150", "v151")
            a("buffer_store_dwordx2 v[144:145], v7, s[16:19], s33 offen offset:%d" % (t * 64 + qq * 16))
            a("s_nop 1")
    a.lab("K1_END")
    a("s_endpgm")

def gen_k2(a):
    a.L.append(".globl %s\n.p2align 8\n.type %s,@function\n%s:" % (K2, K2, K2))
    a("s_cmp_ge_u32 s2, 256")
    a("s_cbranch_scc1 K2_END")
    stamp(a)
    a("s_load_dwordx4 s[4:7], s[0:1], 16")
    a("s_load_dwordx4 s[24:27], s[0:1], 32")
    a("v_and_b32 v1, 63, v0")
    a("v_lshrrev_b32 v2, 6, v0")
    a("s_nop 0")
    a("v_readfirstlane_b32 s28, v2")
    a("v_and_b32 v10, 15, v1")
    a("v_lshrrev_b32 v11, 4, v1")
    a("v_mov_b32 v15, %s" % OOB)
    a("s_waitcnt lgkmcnt(0)")
    stamp(a)
    srd(a, 8, 4, 819200)
    srd(a, 12, 6, 2621440)
    srd(a, 16, 26, 2621440)
    srd(a, 20, 26, KV_SIZE, KV_OFF)
    a("s_and_b32 s33, s2, 7"); a("s_lshr_b32 s34, s2, 3")
    a("s_and_b32 s29, s33, 3"); a("s_lshl_b32 s29, s29, 3"); a("s_and_b32 s35, s34, 7"); a("s_add_u32 s29, s29, s35")
    a("s_lshr_b32 s30, s33, 2"); a("s_lshl_b32 s30, s30, 2"); a("s_lshr_b32 s34, s34, 3"); a("s_add_u32 s30, s30, s34")
    TMP = 16; AF = 112; OP = 160; ND = 16
    ts_list = [(0,0),(1,0),(1,1),(2,0),(2,1),(3,1),(3,2),(4,1),(4,2)]
    a("s_mul_i32 s36, s28, 6400")
    a("s_mul_i32 s37, s28, 320"); a("s_add_u32 s37, s37, %d" % Z_REL)
    a("s_mul_i32 s38, s28, 160")
    a("s_mul_i32 s46, s28, 7168"); a("s_add_u32 s46, s46, 106496")
    a("v_lshlrev_b32 v2, 4, v1")
    for i in range(6):
        a("s_add_u32 m0, s46, %d" % (i * 1024))
        a("s_add_u32 s39, s36, %d" % (i * 1024))
        a("buffer_load_dwordx4 v2, s[20:23], s39 offen lds")
    a("v_add_u32 v3, s36, v2"); a("v_add_u32 v3, 6144, v3")
    a("v_add_u32 v4, s37, v2"); a("v_add_u32 v4, -256, v4")
    a("v_cmp_gt_u32 vcc, 16, v1"); a("s_nop 1"); a("v_cndmask_b32 v3, v4, v3, vcc")
    a("v_cmp_gt_u32 vcc, 36, v1"); a("s_nop 1"); a("v_cndmask_b32 v3, v15, v3, vcc")
    a("s_add_u32 m0, s46, 6144"); a("s_nop 0")
    a("buffer_load_dwordx4 v3, s[20:23], 0 offen lds")
    a("s_lshl_b32 s33, s29, 6"); a("v_add_u32 v12, s33, v10"); a("v_mul_u32_u24 v9, 1280, v12"); a("v_lshl_add_u32 v9, v11, 4, v9")
    for nt in range(4):
        a("s_add_u32 s39, s38, %d" % (nt * 16 * 1280))
        for s_ in range(3):
            a("buffer_load_dwordx4 a[%d:%d], v9, s[16:19], s39 offen offset:%d" % ((nt * 3 + s_) * 4, (nt * 3 + s_) * 4 + 3, s_ * 64))
    a("s_mul_i32 s33, s28, 80*1280"); a("s_mul_i32 s34, s30, 160"); a("s_add_u32 s33, s33, s34")
    a("s_movk_i32 s34, 6554")
    for b in range(5):
        a("v_add_u32 v2, %d, v1" % (64 * b))
        a("v_mul_u32_u24 v3, s34, v2"); a("v_lshrrev_b32 v3, 16, v3")
        a("v_mul_u32_u24 v4, 10, v3"); a("v_sub_u32 v4, v2, v4")
        a("v_mul_u32_u24 v5, 1280, v3"); a("v_lshl_add_u32 v5, v4, 4, v5")
        a("v_add_u32 v%d, s33, v5" % (160 + b))
    a("s_mul_i32 s35, s28, 13312")
    for i in range(13):
        aa, b = i // 5, i % 5
        a("s_add_u32 m0, s35, %d" % (i * 1024))
        a("s_mov_b32 s39, %d" % (aa * 32 * 1280))
        a("buffer_load_dwordx4 v%d, s[8:11], s39 offen lds" % (160 + b))
    a("v_cmp_eq_u32 s[40:41], 0, v11"); a("v_cmp_gt_u32 s[42:43], 2, v11"); a("v_cmp_gt_u32 s[44:45], 3, v11")
    for nt in range(4):
        a("v_mov_b32 v%d, 0" % (OP + (2 * 4 + nt) * 4 + 2)); a("v_mov_b32 v%d, 0" % (OP + (2 * 4 + nt) * 4 + 3))
    frs = [("kv", t, s_) for (t, s_) in ts_list] + [("z", 0, s_) for s_ in range(3)]
    stamp(a)
    a("s_waitcnt vmcnt(25)")
    stamp(a)
    a("v_mov_b32 v14, 6720")
    lastt = None
    for j, (ty, t, s_) in enumerate(frs):
        if ty == "kv":
            if lastt != t:
                a("v_add_u32 v2, %d, v10" % (16 * t))
                a("v_mul_u32_u24 v3, 3277, v2"); a("v_lshrrev_b32 v3, 16, v3"); a("v_mul_u32_u24 v3, 20, v3")
                a("v_mul_u32_u24 v2, 20, v2"); a("v_sub_u32 v7, v2, v3")
                a("v_lshlrev_b32 v8, 3, v11"); a("v_sub_u32 v8, v8, v3")
                lastt = t
        else:
            if lastt != "z":
                a("v_and_b32 v3, 3, v10"); a("v_mul_u32_u24 v3, 20, v3")
                a("v_mov_b32 v7, 1600"); a("v_lshlrev_b32 v8, 3, v11"); a("v_sub_u32 v8, v8, v3")
                lastt = "z"
        a("v_add_u32 v4, %d, v8" % (32 * s_))
        a("v_lshlrev_b32 v5, 3, v11"); a("v_add3_u32 v5, v5, v7, %d" % (32 * s_))
        a("v_lshlrev_b32 v5, 2, v5")
        a("v_cmp_gt_u32 vcc, 20, v4"); a("v_add_u32 v6, 16, v5"); a("v_add_u32 v4, 4, v4"); a("v_cndmask_b32 v5, v14, v5, vcc")
        a("v_cmp_gt_u32 vcc, 20, v4"); a("v_add_u32 v5, s46, v5"); a("s_nop 0"); a("v_cndmask_b32 v6, v14, v6, vcc")
        a("v_add_u32 v6, s46, v6")
        a("ds_read_b128 %s, v5" % vr(TMP + 8 * j, 4))
        a("ds_read_b128 %s, v6" % vr(TMP + 8 * j + 4, 4))
    a("s_waitcnt lgkmcnt(0)")
    for j in range(12):
        for p in range(4):
            a("v_cvt_pk_bf16_f32 v%d, v%d, v%d" % (AF + 4 * j + p, TMP + 8 * j + 2 * p, TMP + 8 * j + 2 * p + 1))
    stamp(a)
    a("s_waitcnt vmcnt(13)")
    for nt in range(4):
        Bf = lambda s_: "a[%d:%d]" % ((nt * 3 + s_) * 4, (nt * 3 + s_) * 4 + 3)
        nd = ND + (nt % 2) * 24
        for s_ in range(3):
            a("v_mfma_f32_16x16x32_bf16 %s, %s, %s, %s" % (vr(nd, 4), vr(AF + 4 * (9 + s_), 4), Bf(s_), "0" if s_ == 0 else vr(nd, 4)))
        seen = set()
        for j, (t, s_) in enumerate(ts_list):
            d = vr(nd + 4 + 4 * t, 4)
            a("v_mfma_f32_16x16x32_bf16 %s, %s, %s, %s" % (d, vr(AF + 4 * j, 4), Bf(s_), d if t in seen else "0"))
            seen.add(t)
        a.nop(10)
        for i in range(4):
            a("v_add_f32 v%d, 0x358637bd, v%d" % (nd + i, nd + i))
        for i in range(4):
            a("v_rcp_f32 v%d, v%d" % (nd + i, nd + i))
        a("s_nop 1")
        a("v_mov_b32 v2, v%d" % nd)
        a("v_cndmask_b32 v3, v%d, v%d, s[40:41]" % (nd + 1, nd))
        a("v_cndmask_b32 v4, v%d, v%d, s[42:43]" % (nd + 2, nd + 1))
        a("v_cndmask_b32 v5, v%d, v%d, s[44:45]" % (nd + 3, nd + 2))
        a("v_mov_b32 v6, v%d" % (nd + 3))
        for t in range(5):
            for i in range(4):
                a("v_mul_f32 v%d, v%d, v%d" % (nd + 4 + 4 * t + i, nd + 4 + 4 * t + i, 2 + t))
            ks = t // 2; hf = t % 2
            base = OP + (ks * 4 + nt) * 4 + hf * 2
            a("v_cvt_pk_bf16_f32 v%d, v%d, v%d" % (base, nd + 4 + 4 * t, nd + 4 + 4 * t + 1))
            a("v_cvt_pk_bf16_f32 v%d, v%d, v%d" % (base + 1, nd + 4 + 4 * t + 2, nd + 4 + 4 * t + 3))
    stamp(a)
    ACC = 16; WF = 96
    a("v_lshrrev_b32 v12, 2, v10"); a("v_lshl_add_u32 v12, v11, 2, v12"); a("v_mul_u32_u24 v2, 160, v12")
    a("v_and_b32 v12, 3, v1"); a("v_lshl_add_u32 v2, v12, 3, v2"); a("v_add_u32 v2, s35, v2")
    a("s_waitcnt vmcnt(0)")
    for ks in range(3):
        for mt in range(5):
            for hf in range(2):
                T = 2 * ks + hf
                if T == 5: T = 4
                a("ds_read_b64_tr_b16 %s, v2 offset:%d" % (vr(WF + ks * 20 + 4 * mt + 2 * hf, 2), T * 16 * 160 + mt * 32))
    for ks in range(3):
        a("s_waitcnt lgkmcnt(%d)" % (10 if ks < 2 else 0))
        for mt in range(5):
            for nt in range(4):
                d = vr(ACC + (mt * 4 + nt) * 4, 4)
                a("v_mfma_f32_16x16x32_bf16 %s, %s, %s, %s" % (d, vr(WF + ks * 20 + 4 * mt, 4), vr(OP + (ks * 4 + nt) * 4, 4), "0" if ks == 0 else d))
    a.nop(10)
    stamp(a)
    a("s_barrier")
    stamp(a)
    a("v_lshlrev_b32 v3, 4, v1")
    a("s_mul_i32 s33, s28, 20480")
    a("v_add_u32 v4, s33, v3")
    for j in range(20):
        a("ds_write_b128 v4, %s offset:%d" % (vr(ACC + 4 * j, 4), j * 1024))
    a("s_waitcnt lgkmcnt(0)")
    stamp(a)
    a("s_barrier")
    stamp(a)
    a("s_lshl_b32 s33, s28, 10")
    a("v_add_u32 v4, s33, v3")
    a("v_add_u32 v5, 61440, v4"); a("v_add_u32 v6, 61440, v5")
    for jj in range(3):
        if jj == 2:
            a("s_cmp_ge_u32 s28, 4"); a("s_cbranch_scc1 K2_FIN")
        for src in range(8):
            a("ds_read_b128 %s, v%d offset:%d" % (vr(16 + 4 * src, 4), 4 + src // 3, (src % 3) * 20480 + jj * 8192))
        a("s_add_u32 s33, s28, %d" % (jj * 8))
        a("s_lshr_b32 s34, s33, 2"); a("s_and_b32 s35, s33, 3")
        a("s_lshl_b32 s36, s29, 6"); a("s_lshl_b32 s37, s35, 4"); a("s_add_u32 s36, s36, s37")
        a("v_add_u32 v50, s36, v10"); a("v_mul_u32_u24 v50, 1280, v50")
        a("v_lshl_add_u32 v50, v11, 3, v50")
        a("s_mul_i32 s36, s30, 160"); a("s_lshl_b32 s37, s34, 5"); a("s_add_u32 s36, s36, s37")
        a("s_waitcnt lgkmcnt(0)")
        for i in range(4):
            for src in range(1, 8):
                a("v_add_f32 v%d, v%d, v%d" % (16 + i, 16 + i, 16 + 4 * src + i))
        a("v_cvt_pk_bf16_f32 v48, v16, v17"); a("v_cvt_pk_bf16_f32 v49, v18, v19")
        a("buffer_store_dwordx2 v[48:49], v50, s[12:15], s36 offen")
        a("s_nop 1")
    a.lab("K2_FIN")
    stamp(a)
    a("s_waitcnt vmcnt(0)")
    stamp(a)
    stamp_flush(a, 24, [(9,0), (9,3), (9,4), (9,7)])
    a.lab("K2_END")
    a("s_endpgm")

def kd(name, vg, sg=96, ag=0):
    return """.amdhsa_kernel %s
  .amdhsa_next_free_vgpr %d
  .amdhsa_next_free_sgpr %d
  .amdhsa_accum_offset %d
  .amdhsa_group_segment_fixed_size 0
  .amdhsa_kernarg_size 48
  .amdhsa_user_sgpr_count 2
  .amdhsa_user_sgpr_kernarg_segment_ptr 1
  .amdhsa_system_sgpr_workgroup_id_x 1
.end_amdhsa_kernel
""" % (name, (vg + 3) // 4 * 4 + ag, sg, (vg + 3) // 4 * 4)

if __name__ == "__main__":
    hdr = open("standalone__linear_attn_block__prompt.s.ref").read().split("; Override launch")[0]
    out = hdr
    out += "; @launch kernel=%s grid=(192,1,1) block=(512,1,1) lds=147456\n" % K1
    out += "; @launch kernel=%s grid=(256,1,1) block=(512,1,1) lds=163840\n" % K2
    out += '.amdgcn_target "amdgcn-amd-amdhsa--gfx950"\n.text\n'
    gen_k1(a)
    gen_k2(a)
    out += "\n".join(a.L) + "\n"
    out += '.section .rodata,"a"\n.p2align 6\n' + kd(K1, 176, ag=80) + kd(K2, 208, ag=48)
    open(sys.argv[1] if len(sys.argv) > 1 else "k.s", "w").write(out)
```
